```python
import torch

def _softmax(x, axis=-1):
    return torch.softmax(x, dim=axis)
def _gelu(x):
    return torch.nn.functional.gelu(x, approximate="tanh")
def _silu(x):
    return torch.nn.functional.silu(x)
def _sigmoid(x):
    return torch.sigmoid(x)
def _layernorm(x, axis=-1, eps=1e-5):
    m = x.mean(dim=axis, keepdim=True)
    v = x.var(dim=axis, keepdim=True, unbiased=False)
    return (x - m) / torch.sqrt(v + eps)
def _scatter_add(tgt, idx, src, axis=0):
    return tgt.clone().index_add_(axis, idx, src)
def _segment_sum(src, seg, n):
    out = torch.zeros((n,) + src.shape[1:], dtype=src.dtype)
    return out.index_add_(0, seg, src)
def _pad(x, pw):
    flat = tuple(v for pair in reversed(pw) for v in pair)
    return torch.nn.functional.pad(x, flat)

kernel_name = 'sequential_preLN__sliding_block_cached__dense_activation_squared_relu__decode'

def setup_inputs():

    _w = (lambda a: (lambda t: t.to(torch.bfloat16) if t.is_floating_point() else t)(torch.as_tensor(a)))
    def _A_setup():
        B, Sq, D = 1, 1, 512
        Hq, Hkv, Sk, Dh = 32, 8, 65536, 128
        assert Hq % Hkv == 0, (Hq, Hkv)
        return {
            "x": _w((lambda *s: torch.randn(*s, dtype=torch.bfloat16) * 0.05)(B, Sq, D)),
            "k_cache": _w((lambda *s: torch.randn(*s, dtype=torch.bfloat16) * 3.2)(B, Hkv, Sk, Dh)),
            "v_cache": _w((lambda *s: torch.randn(*s, dtype=torch.bfloat16) * 0.4)(B, Hkv, Sk, Dh)),
            "wq": _w((lambda *s: torch.randn(*s, dtype=torch.bfloat16) * 3.2)(D, Hq * Dh) * (D ** -0.5)),
            "wo": _w((lambda *s: torch.randn(*s, dtype=torch.bfloat16) * 0.4)(Hq * Dh, D) * ((Hq * Dh) ** -0.5)),
        }
    _A_in = _A_setup()

    def _B_setup():
        B, S, D, F = 1, 1, 512, 1792
        return {
            "x": _w((lambda *s: torch.randn(*s, dtype=torch.bfloat16) * 0.05)(B, S, D)),
            "w1": _w((lambda *s: torch.randn(*s, dtype=torch.bfloat16) * 0.05)(D, F)),
            "b1": _w((lambda *s: torch.randn(*s, dtype=torch.bfloat16) * 0.8)(F)),
            "w2": _w((lambda *s: torch.randn(*s, dtype=torch.bfloat16) * 0.05)(F, D)),
            "b2": _w((lambda *s: torch.randn(*s, dtype=torch.bfloat16) * 1.6)(D)),
        }
    _B_in = _B_setup()

    return {
        "A_x": _A_in["x"],
        "A_k_cache": _A_in["k_cache"],
        "A_v_cache": _A_in["v_cache"],
        "A_wq": _A_in["wq"],
        "A_wo": _A_in["wo"],
        "B_x": _B_in["x"],
        "B_w1": _B_in["w1"],
        "B_b1": _B_in["b1"],
        "B_w2": _B_in["w2"],
        "B_b2": _B_in["b2"],
    }

def reference(A_x, A_k_cache, A_v_cache, A_wq, A_wo, B_x, B_w1, B_b1, B_w2, B_b2):
    def _A_ref(x, k_cache, v_cache, wq, wo):
        B, Sq, D = x.shape
        Hq, Dh = 32, 128
        Hkv, Sk = k_cache.shape[1], k_cache.shape[2]
        W = min(4096, max(256, Sk // 4))
        rep = Hq // Hkv
        q = (lambda x, *d: x.permute(*d))((x @ wq).reshape(B, Sq, Hq, Dh), 0, 2, 1, 3)
        k = (lambda x, n, axis: torch.repeat_interleave(x, n, dim=axis))(k_cache[:, :, Sk - W:, :], rep, axis=1)
        v = (lambda x, n, axis: torch.repeat_interleave(x, n, dim=axis))(v_cache[:, :, Sk - W:, :], rep, axis=1)
        scores = torch.einsum("bhqd,bhkd->bhqk", q, k) * (Dh ** -0.5)
        p = _softmax(scores, axis=-1)
        o = torch.einsum("bhqk,bhkd->bhqd", p, v)
        return (lambda x, *d: x.permute(*d))(o, 0, 2, 1, 3).reshape(B, Sq, Hq * Dh) @ wo

    def _B_ref(x, w1, b1, w2, b2):
        h = torch.einsum("bsd,df->bsf", x, w1) + b1
        zero = torch.zeros_like(h)
        r = torch.where(h > zero, h, zero)
        h = r * r
        out = torch.einsum("bsf,fd->bsd", h, w2) + b2
        return out

    x = A_x
    h = x + _A_ref(_layernorm(x, axis=-1), A_k_cache, A_v_cache, A_wq, A_wo)
    h2 = h + _B_ref(_layernorm(h, axis=-1), B_w1, B_b1, B_w2, B_b2)
    return h2
```

```python
import re
NAME = "sequential_preLN__sliding_block_cached__dense_activation_squared_relu__decode"
HEADER = open("cdna_kernels/%s.s.ref" % NAME).read().split("; Override launch")[0]

TRANS = ("v_exp_f32", "v_log_f32", "v_rcp_f32", "v_rsq_f32", "v_sqrt_f32", "v_sin_f32", "v_cos_f32")
def regs_of(op):
    op = op.strip().lstrip("-")
    m = re.fullmatch(r"abs\((.*)\)|\|(.*)\|", op)
    if m: op = m.group(1) or m.group(2)
    m = re.fullmatch(r"([vsa])(\d+)", op)
    if m: return {(m.group(1), int(m.group(2)))}
    m = re.fullmatch(r"([vsa])\[(\d+):(\d+)\]", op)
    if m: return {(m.group(1), i) for i in range(int(m.group(2)), int(m.group(3)) + 1)}
    if op in ("vcc", "vcc_lo", "vcc_hi"): return {("vcc", 0)}
    if op in ("exec", "exec_lo", "exec_hi"): return {("exec", 0)}
    if op == "m0": return {("m0", 0)}
    return set()

class Ins:
    def __init__(self, text):
        self.text = text
        t = text.split(";")[0].strip()
        p = t.split(None, 1)
        self.op = p[0]
        rest = p[1] if len(p) > 1 else ""
        ops = [o.strip() for o in re.split(r",(?![^\[]*\])", rest)] if rest else []
        self.mods = ""
        if ops:
            q = ops[-1].split(None, 1)
            ops[-1] = q[0]
            self.mods = q[1] if len(q) > 1 else ""
        self.ops = ops
        op = self.op
        self.mfma = op.startswith("v_mfma") or op.startswith("v_smfmac")
        self.valu = op.startswith("v_") and not self.mfma
        self.trans = any(op.startswith(x) for x in TRANS)
        self.dpp = "_dpp" in op
        self.perml = op.startswith("v_permlane")
        self.rdlane = op.startswith("v_readlane") or op.startswith("v_readfirstlane")
        self.ds = op.startswith("ds_")
        self.vmem = op.startswith(("buffer_", "global_"))
        self.salu = op.startswith("s_")
        self.ldsdma = self.vmem and (" lds" in " " + self.mods or "_lds_" in op)
        R = [regs_of(o) for o in ops]
        allr = set().union(*R) if R else set()
        self.w = set(); self.r = set()
        if self.valu or self.mfma:
            self.w = set(R[0]); self.r = set().union(*R[1:]) if len(R) > 1 else set()
            if op.startswith(("v_add_co", "v_sub_co", "v_addc_co", "v_div_scale", "v_mad_u64")): self.w |= R[1]
            if op.startswith(("v_fmac", "v_pk_fmac", "v_dot2c", "v_writelane", "v_smfmac")) or self.dpp or "_sdwa" in op: self.r |= R[0]
            if self.perml: self.w |= R[1]; self.r |= R[0]
            if op.startswith("v_cmpx"): self.w.add(("exec", 0))
            if op.startswith("v_cndmask") and len(ops) == 3: self.r.add(("vcc", 0))
        elif self.ds:
            if op.startswith(("ds_read", "ds_bpermute", "ds_permute", "ds_swizzle")) or "_rtn" in op:
                self.w = set(R[0]); self.r = set().union(*R[1:])
            else: self.r = allr
        elif self.vmem:
            if ("_load" in op and not self.ldsdma) or ("atomic" in op and "sc0" in self.mods and op.startswith("global")):
                self.w = set(R[0]); self.r = set().union(*R[1:])
            else: self.r = allr
        elif self.salu:
            if op.startswith(("s_cmp", "s_cbranch", "s_branch", "s_waitcnt", "s_nop", "s_barrier", "s_endpgm", "s_setprio", "s_sleep", "s_bitcmp")):
                self.r = allr
            elif R:
                self.w = set(R[0]); self.r = set().union(*R[1:]) if len(R) > 1 else set()
                if "saveexec" in op: self.w.add(("exec", 0))
        self.wide_store = self.vmem and "store" in op and op.endswith(("x3", "x4"))
        if self.wide_store:
            self.sdata = R[0] if op.startswith("buffer") else R[1]
        self.passes = 0
        if self.mfma:
            self.passes = 8 if "32x32" in op else (2 if "4x4" in op else 4)
    def states(self):
        if self.op == "s_nop": return int(self.ops[0]) + 1
        return 1

def need(p, c):
    n = 0
    vw = {x for x in p.w if x[0] in "va" and x[0] != "vcc"}
    vw = {x for x in p.w if x[0] in ("v", "a")}
    sw = {x for x in p.w if x[0] in ("s", "vcc")}
    if p.valu:
        if vw & c.r:
            if c.mfma: n = max(n, 2)
            if c.dpp: n = max(n, 2)
            if c.perml: n = max(n, 2)
            if c.rdlane: n = max(n, 1)
            if p.trans and c.valu: n = max(n, 1)
            if "_sdwa" in p.op or "op_sel" in p.mods: n = max(n, 1)
        if sw & c.r:
            if c.valu: n = max(n, 4 if c.op.startswith(("v_readlane", "v_writelane")) else 2)
            if c.vmem: n = max(n, 5)
        if ("exec", 0) in p.w:
            if c.dpp: n = max(n, 5)
            if c.mfma or c.perml or c.rdlane or c.op.startswith("v_writelane"): n = max(n, 4)
    if p.op.startswith("v_dot") and (vw & (c.r | c.w)):
        same_acc = c.op == p.op and not (vw & (regs_of(c.ops[1]) | regs_of(c.ops[2])))
        if not same_acc: n = max(n, 3)
    if p.mfma:
        t = {2: 0, 4: 1, 8: 2}[p.passes]
        if c.mfma:
            cr = regs_of(c.ops[3]) if not c.op.startswith("v_smfmac") else regs_of(c.ops[0])
            ab = regs_of(c.ops[1]) | regs_of(c.ops[2]) | (regs_of(c.ops[3]) if c.op.startswith("v_smfmac") else set())
            if vw & ab: n = max(n, (5, 8, 12)[t])
            if vw & cr:
                n = max(n, (2, 0, 0)[t] if (cr == vw and c.passes == p.passes) else (4, 6, 10)[t])
            elif vw & c.w: n = max(n, (5, 8, 12)[t])
        elif (c.valu or c.ds or c.vmem) and (vw & (c.r | c.w)): n = max(n, (5, 8, 12)[t])
        pc = regs_of(p.ops[3]) if len(p.ops) > 3 else set()
        if c.valu and (pc & c.w): n = max(n, (1, 3, 7)[t])
    if p.salu and ("m0", 0) in p.w and c.ldsdma: n = max(n, 1)
    if p.wide_store and (p.sdata & c.w): n = max(n, 2 if c.valu else 1)
    return n

class Asm:
    def __init__(self, auto=True):
        self.lines = []; self.hist = []; self.auto = auto; self.nops = 0
    def __call__(self, s):
        for l in s.strip("\n").split("\n"):
            l = l.strip()
            if not l: continue
            if l.startswith(";") or l.startswith("."):
                self.lines.append("    " + l); continue
            if l.endswith(":"):
                self.lines.append(l); continue
            ins = Ins(l)
            if self.auto:
                d = 0; pad = 0
                for p in reversed(self.hist[-24:]):
                    pad = max(pad, need(p, ins) - d)
                    d += p.states()
                    if d > 20: break
                if pad > 0:
                    self.nops += pad
                    nop = Ins(f"s_nop {pad-1}")
                    self.lines.append("    " + nop.text); self.hist.append(nop)
            self.lines.append("    " + l); self.hist.append(ins)
    def text(self):
        return "\n".join(self.lines) + "\n"

def wrap(body, grid, block, lds, vgpr, sgpr=102, accum=None):
    accum = accum or min(256, (vgpr + 3) // 4 * 4)
    k = NAME + "_kernel"
    return (HEADER + f"; @launch grid=({grid},1,1) block=({block},1,1) lds={lds}\n"
      + '.amdgcn_target "amdgcn-amd-amdhsa--gfx950"\n.text\n'
      + f".globl {k}\n.p2align 8\n.type {k},@function\n{k}:\n" + body
      + f'.section .rodata,"a"\n.p2align 6\n.amdhsa_kernel {k}\n'
      + f"  .amdhsa_next_free_vgpr {vgpr}\n  .amdhsa_next_free_sgpr {sgpr}\n  .amdhsa_accum_offset {accum}\n"
      + "  .amdhsa_group_segment_fixed_size 0\n  .amdhsa_kernarg_size 104\n  .amdhsa_user_sgpr_count 2\n"
      + "  .amdhsa_user_sgpr_kernarg_segment_ptr 1\n  .amdhsa_system_sgpr_workgroup_id_x 1\n"
      + "  .amdhsa_float_denorm_mode_32 3\n"
      + ".end_amdhsa_kernel\n")
```

```python
import sys
from asmlib import *

WS_FL, WS_H1, WS_H1B, WS_H3, WS_H5, WS_H2A, WS_H2B, WS_ST = 0x8000, 0x20000, 0x40000, 0x100000, 0x140000, 0x80000, 0x200000, 0x180000
LQ, LK, LV, LO, LW1, LW2, SB = 0, 16384, 65536, 114688, 16384, 81920, 147456
LDS_BYTES = SB + 8192
PP = 464
QB, QP = 4096, 320
WB = 1536
LOG2E = 0x3fb8aa3b
SCALE = 0x3db504f3
POLL_MAX = 20000
KV0 = (65536-4096)*256
OOB = 0x1ffff80

def gen(stamps=False, nt="nt", amp=None, fast=True, win=6, win5=6, fw2="8"*16, fw1="8"*16, pfo=True, fine=None,
        h5ld="sc1", h5wait=True, h3ld="sc1", ftr=False, rotf=True, k0=5, f0=4, pol=None, c3=7, warm=0, rclr=True, h5d=None, p2=7, ntrig=0, xw=3, fill=0, w2w=None, x0=True, wino=None, win6=None, pf2=1, wom=1, w2m=1, w1m=1, hb=False, nh=None, nrep=32, t3=True, gat=True, h5n=False, pipe=0):
    a = Asm()
    dbg = stamps or amp
    streg = lambda i: 60+2*i if i < 10 else 96+2*(i-10)
    fcnt = [0]; fall = [0]
    def fs(setname):
        if fine and fine[0] == setname:
            fall[0] += 1
            if len(fine) > 1 and str(fall[0] - 1) not in fine[1:]: return
            fcnt[0] += 1
            a(f"s_memtime s[{streg(fcnt[0])}:{streg(fcnt[0])+1}]")
    def stamp(i):
        if fine == "T":
            if i in (5, 7, 9, 10, 11): a(f"s_memtime s[{streg(i)}:{streg(i)+1}]")
            return
        if fine and i: return
        if stamps or (amp and i in amp): a(f"s_memrealtime s[{streg(i)}:{streg(i)+1}]")
    DPPF = "row_mask:0xf bank_mask:0xf"
    uid = [0]
    def lab(p):
        uid[0] += 1
        return f"L_{p}_{uid[0]}"
    def lg(n): return f"s_waitcnt lgkmcnt({n})"
    def fl(n=None):
        for i in range(fill if n is None else min(fill, n)): a("v_mov_b32 v151, v151")
    def zero(r, n):
        for i in range(0, n, 2): a(f"v_mov_b64 v[{r+i}:{r+i+1}], 0")
    def allred_groups(op, x, t):
        a(f"v_mov_b32 v{t}, v{x}\nv_permlane32_swap_b32 v{t}, v{x}\n{op} v{x}, v{x}, v{t}")
        a(f"v_mov_b32 v{t}, v{x}\nv_permlane16_swap_b32 v{t}, v{x}\n{op} v{x}, v{x}, v{t}")
    def redscat4(b):
        a(f"v_permlane32_swap_b32 v{b}, v{b+2}\nv_permlane32_swap_b32 v{b+1}, v{b+3}")
        a(f"v_add_f32 v{b}, v{b}, v{b+2}\nv_add_f32 v{b+1}, v{b+1}, v{b+3}")
        a(f"v_permlane16_swap_b32 v{b}, v{b+1}\nv_add_f32 v{b}, v{b}, v{b+1}")
    def redscat8(b, rors):
        for i in range(4): a(f"v_permlane32_swap_b32 v{b+i}, v{b+4+i}")
        for i in (0, 2, 1, 3): a(f"v_add_f32 v{b+i}, v{b+i}, v{b+4+i}")
        for i in range(2): a(f"v_permlane16_swap_b32 v{b+i}, v{b+2+i}")
        for i in range(2): a(f"v_add_f32 v{b+i}, v{b+i}, v{b+2+i}")
        for r in rors:
            for i in range(2): a(f"v_add_f32_dpp v{b+i}, v{b+i}, v{b+i} row_ror:{r} {DPPF}")
    ROWM = ("quad_perm:[1,0,3,2]", "quad_perm:[2,3,0,1]", "row_half_mirror", "row_mirror")
    def rowred(op, xs):
        for m in ROWM:
            for x in xs: a(f"{op}_dpp v{x}, v{x}, v{x} {m} {DPPF}")
    def unpack(dst, src, msk):
        for i in range(4): a(f"v_lshlrev_b32 v{dst+2*i}, 16, v{src+i}\nv_and_b32 v{dst+2*i+1}, v{msk}, v{src+i}")
    def layernorm(src, f, dst, msk):
        unpack(f, src, msk)
        s1, s2, t1, t2 = f+8, f+9, f+10, f+11
        a(f"v_pk_mul_f32 v[{t1}:{t2}], v[{f}:{f+1}], v[{f}:{f+1}]\nv_pk_add_f32 v[{s1}:{s2}], v[{f}:{f+1}], v[{f+2}:{f+3}]")
        for i in (2, 4, 6):
            a(f"v_pk_fma_f32 v[{t1}:{t2}], v[{f+i}:{f+i+1}], v[{f+i}:{f+i+1}], v[{t1}:{t2}]")
            if i > 2: a(f"v_pk_add_f32 v[{s1}:{s2}], v[{s1}:{s2}], v[{f+i}:{f+i+1}]")
        a(f"v_add_f32 v{s1}, v{s1}, v{s2}\nv_add_f32 v{s2}, v{t1}, v{t2}")
        a(f"v_permlane32_swap_b32 v{s1}, v{s2}\nv_add_f32 v{s1}, v{s1}, v{s2}")
        rowred("v_add_f32", [s1])
        a(f"v_mov_b32 v{s2}, v{s1}\nv_permlane16_swap_b32 v{s2}, v{s1}\nv_add_f32 v{s1}, v{s1}, v{s2}")
        a(f"v_mul_f32 v{s1}, 0x3b000000, v{s1}\nv_mov_b32 v{s2}, v{s1}\nv_permlane32_swap_b32 v{s1}, v{s2}")
        a(f"v_fma_f32 v{s2}, -v{s1}, v{s1}, v{s2}\nv_cvt_pk_bf16_f32 v{s1}, 0, v{s1}")
        a(f"v_max_f32 v{s2}, 0, v{s2}\nv_cvt_pk_bf16_f32 v{s2}, 0, v{s2}")
        a(f"v_add_f32 v{s2}, 0x3727c5ac, v{s2}\nv_cvt_pk_bf16_f32 v{s2}, 0, v{s2}")
        a(f"v_sqrt_f32 v{s2}, v{s2}")
        for i in (0, 2): a(f"v_pk_add_f32 v[{f+i}:{f+i+1}], v[{f+i}:{f+i+1}], v[{s1}:{s1+1}] op_sel_hi:[1,0] neg_lo:[0,1] neg_hi:[0,1]")
        a(f"v_cvt_pk_bf16_f32 v{s2}, 0, v{s2}\nv_rcp_f32 v{t1}, v{s2}")
        for i in (4, 6): a(f"v_pk_add_f32 v[{f+i}:{f+i+1}], v[{f+i}:{f+i+1}], v[{s1}:{s1+1}] op_sel_hi:[1,0] neg_lo:[0,1] neg_hi:[0,1]")
        for i in range(8): a(f"v_cvt_pk_bf16_f32 v{f+i}, 0, v{f+i}")
        for i in (0, 2, 4, 6): a(f"v_pk_mul_f32 v[{f+i}:{f+i+1}], v[{f+i}:{f+i+1}], v[{t1}:{t1+1}] op_sel_hi:[1,0]")
        for i in range(4): a(f"v_cvt_pk_bf16_f32 v{dst+i}, v{f+2*i}, v{f+2*i+1}")
    IDX = 150
    def smf(d, act, w): return f"v_smfmac_f32_16x16x64_bf16 v[{d}:{d+3}], v[{act}:{act+3}], v[{w}:{w+7}], v{IDX}"
    def pair(t, d): return f"v_pk_add_f32 v[{t}:{t+1}], v[{d}:{d+1}], v[{d+6}:{d+7}]\nv_add_f32 v{t}, v{t}, v{t+1}"
    def trsetup():
        a("v_and_b32 v14, 8, v0\nv_lshlrev_b32 v15, 3, v14\nv_lshl_add_u32 v14, v14, 9, v15")
        a("v_lshl_add_u32 v14, v11, 9, v14\nv_and_b32 v15, 1, v11\nv_lshl_add_u32 v14, v15, 5, v14")
        a("v_and_b32 v15, 4, v0\nv_lshl_add_u32 v14, v15, 5, v14\nv_and_b32 v15, 3, v0\nv_lshl_add_u32 v14, v15, 3, v14")
        a(f"v_and_b32 v15, 1, v0\nv_mul_u32_u24 v15, 0xaaaa, v15\nv_add_u32 v{IDX}, 0x4444, v15")
    def trread(n, dst, addr, base=0):
        for m in range(n):
            for q in range(4): a(f"ds_read_b64_tr_b16 v[{dst+8*m+2*q}:{dst+8*m+2*q+1}], v{addr} offset:{base + m*8192 + (q>>1)*2048 + (q&1)*256}")
    M0 = 80
    def poll(loads, chk, masks=None, each=None, mid=None, fl="sc1", hot=False):
        L, D = lab("poll"), lab("done")
        m = lambda i: f"s[{M0+2*i}:{M0+2*i+1}]"
        ld = lambda dst, voff, soff, imm: f"buffer_load_dwordx4 v[{dst}:{dst+3}], v{voff}, s[8:11], {soff} offen offset:{imm} {fl}"
        for i, grp in enumerate(loads):
            if masks and masks[i] != "-1": a(f"s_mov_b64 exec, {masks[i]}")
            for g_ in grp: a(ld(*g_))
        if masks: a("s_mov_b64 exec, -1")
        for i in range(len(loads)): a(f"s_mov_b64 {m(i)}, {masks[i] if masks else -1}")
        a(f"s_movk_i32 s58, {POLL_MAX}")
        if mid: mid()
        a(f"s_branch {L}w\n{L}:")
        if each: a(each)
        for i, grp in enumerate(loads):
            sk = lab("sk")
            a(f"s_mov_b64 exec, {m(i)}")
            if len(loads) > 1: a(f"s_cbranch_execz {sk}")
            for g_ in grp: a(ld(*g_))
            a(f"{sk}:")
        a("s_mov_b64 exec, -1\ns_sub_u32 s58, s58, 1\ns_cbranch_scc1 " + D)
        a(f"{L}w:")
        if hot:
            for i in range(warm): a("v_mov_b32 v151, v151")
        a("s_waitcnt vmcnt(0)")
        for i, grp in enumerate(loads):
            if len(grp) == 1: a(chk(grp[0][0], "vcc"))
            else: a(chk(grp[0][0], "vcc") + "\n" + chk(grp[1][0], "s[54:55]") + "\ns_or_b64 vcc, vcc, s[54:55]")
            a(f"s_and_b64 {m(i)}, {m(i)}, vcc")
            if i: a(f"s_or_b64 s[56:57], {m(0) if i == 1 else 's[56:57]'}, {m(i)}")
        a(f"s_cbranch_scc1 {L}\n{D}:\ns_waitcnt vmcnt(0)")
    chk_tag = lambda d, o: f"v_cmp_ne_u32 {o}, s7, v{d+3}"
    chk_sen = lambda d, o: f"v_cmp_eq_u32 {o}, -1, v{d+3}"
    TAG = "s_mul_i32 s7, s6, 0x9E3779B1\ns_add_u32 s7, s7, 0x7F4A7C15\ns_bitset0_b32 s7, 31"
    WF = 112
    def osetup():
        a(f"s_lshr_b32 s46, s3, 2\ns_lshl_b32 s44, s4, 16\ns_lshl_b32 s45, s46, 15\ns_add_u32 s44, s44, s45\ns_lshr_b32 s45, s5, 3\ns_lshl_b32 s45, s45, 9\ns_add_u32 s44, s44, s45\ns_lshl_b32 s45, s18, 7\ns_add_u32 s44, s44, s45\ns_add_u32 s44, s44, {WS_H2A}\ns_add_u32 s45, s44, 16384")
        a("v_and_b32 v152, 0x70, v2\nv_lshl_add_u32 v152, v8, 11, v152")
        a(f"s_lshl_b32 s47, s46, 9\ns_lshl_b32 s48, s18, 6\ns_add_u32 s47, s47, s48\ns_add_u32 s47, s47, {SB}")
        a("v_and_b32 v153, 32, v0\nv_and_b32 v154, 3, v0\nv_lshl_add_u32 v153, v154, 3, v153\nv_and_b32 v154, 1, v11\nv_lshl_add_u32 v153, v154, 2, v153\nv_and_b32 v154, 4, v0\nv_lshl_add_u32 v153, v154, 6, v153\nv_add_u32 v153, s47, v153")
        a(f"s_lshl_b32 s47, s46, 6\ns_add_u32 s47, s47, {SB+WB}\nv_lshlrev_b32 v154, 5, v154\nv_lshl_add_u32 v154, v8, 2, v154\nv_add_u32 v154, s47, v154")
        a("s_mov_b32 s48, -1\ns_sub_u32 s49, s46, 1\nv_mov_b32 v155, 0xffff0000")
        zero(156, 4)
        if pipe: a("v_mov_b64 v[160:161], -1\nv_mov_b64 v[162:163], -1\ns_mov_b64 exec, s[48:49]\nv_mov_b64 v[156:157], -1\nv_mov_b64 v[158:159], -1\ns_mov_b64 exec, -1")
    def locflag(r):
        a(f"v_or3_b32 v{r}, v{r}, v{r+1}, v{r+2}\nv_or_b32 v{r}, v{r}, v{r+3}\nv_readfirstlane_b32 s59, v{r}")

    if stamps:
        for i in range(1, 12): a(f"s_mov_b32 s{streg(i)}, 0")
    stamp(0)
    a("s_load_dwordx8 s[32:39], s[0:1], 0")
    REST = "s_load_dwordx8 s[40:47], s[0:1], 32\ns_load_dwordx4 s[48:51], s[0:1], 64\ns_load_dwordx2 s[52:53], s[0:1], 80"
    a("s_cmp_lt_u32 s2, 240\ns_cbranch_scc1 L_npf\nv_cmp_gt_u32 vcc, 88, v0\ns_and_b64 exec, exec, vcc\ns_cbranch_execz L_npf2")
    a("s_getpc_b64 s[16:17]\nv_lshlrev_b32 v3, 7, v0\nglobal_load_dword v20, v3, s[16:17] offset:512\nL_npf2:\ns_mov_b64 exec, -1\nL_npf:")
    a("v_lshrrev_b32 v1, 6, v0\nv_and_b32 v0, 63, v0\ns_cmp_ge_u32 s2, 256\nv_readfirstlane_b32 s3, v1\ns_cbranch_scc1 L_end")
    a("s_and_b32 s4, s2, 7\ns_lshr_b32 s5, s2, 3\ns_and_b32 s18, s3, 3")
    a("s_mov_b32 s10, 0x400000\ns_mov_b32 s11, 0x20000")
    a("v_lshlrev_b32 v2, 4, v0\nv_and_b32 v10, 15, v0\nv_lshrrev_b32 v11, 4, v0")
    a("v_lshrrev_b32 v8, 3, v0\nv_and_b32 v9, 32, v0\nv_and_b32 v3, 0x70, v2\nv_xor_b32 v9, v9, v3")
    a(f"s_and_b32 s29, s5, 3\ns_mov_b32 s14, {512*4096*2}\ns_mov_b32 s15, 0x20000\ns_cmp_lt_u32 s3, 4\ns_cbranch_scc0 L_lw")
    a("s_load_dwordx2 s[8:9], s[0:1], 96")
    if c3 < 7: a(f"s_cmp_ge_u32 s5, {4*c3+4}\ns_cselect_b32 s12, 4, 0\ns_sub_u32 s12, s5, s12")
    sx = "s12" if c3 < 7 else "s5"
    a(f"s_mul_i32 s25, {sx}, 37\ns_lshr_b32 s25, s25, 8\ns_mul_i32 s24, s25, 7\ns_sub_u32 s24, {sx}, s24\ns_cmp_ge_u32 s24, 3\ns_addc_u32 s24, s24, 0")
    a(f"s_lshr_b32 s12, s5, 2\ns_cmp_eq_u32 s12, {c3}\ns_cselect_b32 s25, s29, s25\ns_cselect_b32 s24, 3, s24")
    a("v_lshlrev_b32 v12, 6, v10\nv_lshl_add_u32 v12, v11, 4, v12\ns_lshl_b32 s28, s25, 8\nv_xor_b32 v13, s28, v12")
    a("s_and_b32 s20, s3, 1\ns_lshl_b32 s21, s20, 6\nv_lshl_add_u32 v14, v8, 13, v9\nv_xor_b32 v14, s21, v14")
    a("s_lshl_b32 s26, s25, 20\ns_lshl_b32 s27, s3, 18\ns_add_u32 s26, s26, s27\ns_lshl_b32 s27, s4, 10\ns_add_u32 s26, s26, s27\ns_lshl_b32 s27, s24, 7\ns_add_u32 s26, s26, s27\ns_lshl_b32 m0, s3, 12")
    a(f"s_lshl_b32 s20, s4, 14\ns_lshl_b32 s21, s25, 12\ns_add_u32 s20, s20, s21\ns_lshl_b32 s21, s24, 9\ns_add_u32 s20, s20, s21\ns_lshl_b32 s21, s3, 7\ns_add_u32 s20, s20, s21\ns_add_u32 s21, s20, {WS_H1B}\ns_add_u32 s20, s20, {WS_H1}")
    a("v_mov_b64 v[4:5], -1\nv_mov_b64 v[6:7], -1\nv_lshlrev_b32 v3, 7, v0")
    if x0: a("s_cmp_lg_u32 s3, 0\ns_waitcnt lgkmcnt(0)\ns_cbranch_scc1 L_nx\nglobal_load_dwordx4 v[16:19], v13, s[32:33]\nL_nx:\ns_mov_b32 s12, s38\ns_mov_b32 s13, s39")
    else: a("s_waitcnt lgkmcnt(0)\nglobal_load_dwordx4 v[16:19], v13, s[32:33]\ns_mov_b32 s12, s38\ns_mov_b32 s13, s39")
    stamp(8)
    for i in range(4):
        a(f"buffer_load_dwordx4 v14, s[12:15], s26 offen offset:{i*1024} {nt} lds")
        if i < 3: a(f"s_add_u32 s26, s26, {65536-1024}")
    a(f"s_lshl_b32 s22, s4, 5\ns_add_u32 s22, s22, s5\ns_lshl_b32 s23, s22, 11\ns_add_u32 s23, s23, {WS_H2A}\ns_lshl_b32 s22, s22, 7\ns_add_u32 s22, s22, {WS_FL}\ns_sub_u32 s26, s20, 256")
    a(f"s_cmp_eq_u32 s3, 2\ns_cselect_b32 s26, s26, s22\ns_cselect_b32 s16, 15, 1\ns_cmp_eq_u32 s3, 1\ns_cselect_b32 s26, s23, s26\ns_cselect_b32 s16, 0x1ff, s16\ns_cselect_b32 s23, s23, {OOB}\ns_mov_b32 s17, 0")
    a("buffer_store_dwordx4 v[4:7], v2, s[8:11], s23 offen\ns_mov_b64 exec, s[16:17]\nbuffer_load_dword v159, v3, s[8:11], s26 offen sc1")
    a("s_mov_b64 exec, -1\ns_barrier\ns_branch L_cw")

    a("L_lw:\ns_cmp_eq_u32 s3, 8\ns_cbranch_scc0 L_lw2\ns_sub_u32 s12, s5, 16\ns_cmp_lt_u32 s12, 12\ns_cbranch_scc1 L_end\ns_barrier\ns_branch L_w8")
    a("L_lw2:\ns_cmp_ge_u32 s5, 28\ns_cbranch_scc1 L_lf")
    a("s_mul_i32 s16, s5, 5\ns_sub_u32 s16, s16, 12\ns_mov_b32 s19, 1\ns_mul_i32 s17, s5, 6\ns_sub_u32 s17, s17, 32\ns_cmp_lt_u32 s5, 20\ns_cselect_b32 s16, s17, s16\ns_cselect_b32 s19, 2, s19")
    a("s_lshl_b32 s17, s5, 2\ns_cmp_lt_u32 s5, 16\ns_cselect_b32 s16, s17, s16\ns_cselect_b32 s19, 0, s19")
    a(f"s_lshl_b32 s17, s4, 24\ns_lshl_b32 s27, s18, 15\ns_add_u32 s17, s17, s27\ns_add_u32 s17, s17, {KV0}\ns_lshl_b32 s27, s18, 11\ns_mov_b32 s30, {8*65536*256}\ns_mov_b32 s31, 0x20000")
    UO = [52, 53, 54, 55, 56, 57]
    def uoff(k):
        r = UO[k]
        a(f"s_lshr_b32 s21, s16, 4\ns_lshl_b32 s{r}, s21, 17\ns_xor_b32 s21, s21, s16\ns_and_b32 s21, s21, 3\ns_lshl_b32 s21, s21, 13\ns_add_u32 s{r}, s{r}, s21\ns_and_b32 s21, s16, 12\ns_lshl_b32 s21, s21, 9\ns_add_u32 s{r}, s{r}, s21\ns_add_u32 s{r}, s{r}, s17\ns_add_u32 s16, s16, 1")
    NP = (k0 + 1) // 2
    for k in range(NP): uoff(k)
    a("s_and_b32 s20, s18, 1\ns_lshl_b32 s20, s20, 7\nv_xor_b32 v6, s20, v2\nv_lshlrev_b32 v4, 4, v11\nv_xor_b32 v4, v4, v6\nv_xor_b32 v5, 64, v4\nv_lshlrev_b32 v7, 5, v11\nv_xor_b32 v6, v7, v6")
    VF, PF = 64, 16
    def lsetup():
        a("s_load_dwordx2 s[8:9], s[0:1], 96\ns_load_dwordx2 s[40:41], s[0:1], 32")
        a("v_lshrrev_b32 v112, 2, v10\nv_and_b32 v113, 1, v11\nv_lshl_add_u32 v113, v113, 2, v112\ns_lshl_b32 s12, s18, 1\nv_xor_b32 v113, s12, v113\nv_lshlrev_b32 v113, 5, v113")
        a(f"v_lshl_add_u32 v112, v11, 3, v112\nv_lshl_add_u32 v112, v112, 8, v113\nv_and_b32 v13, 3, v0\nv_lshl_add_u32 v112, v13, 3, v112\nv_add_u32 v112, {LV}, v112\nv_xor_b32 v113, 32, v112")
        a(f"v_mul_u32_u24 v114, {PP}, v13\nv_lshl_add_u32 v114, v11, 4, v114\nv_add_u32 v114, {SB+2048}, v114")
        a("v_and_b32 v3, 1, v0\nv_lshlrev_b32 v3, 6, v3\nv_lshl_add_u32 v3, v11, 4, v3\nv_and_b32 v12, 2, v0\nv_lshl_add_u32 v3, v12, 8, v3")
        a(f"s_lshl_b32 s24, s4, 16\ns_lshl_b32 s25, s5, 11\ns_add_u32 s24, s24, s25\ns_lshl_b32 s25, s18, 7\ns_add_u32 s24, s24, s25\ns_add_u32 s25, s24, {WS_H2B}\ns_add_u32 s24, s24, {WS_H2A}")
        a("s_mov_b32 s50, 0x000f000f\ns_mov_b32 s51, 0x000f000f\ns_waitcnt lgkmcnt(0)\ns_load_dword s6, s[8:9], 0")
        zero(40, 12)
        for i in range(4): a(f"v_mov_b32 v{52+i}, 0x3f803f80")
        a(f"v_mov_b32 v116, {SB+1152}\nv_lshlrev_b32 v115, 4, v13\nv_add_u32 v115, {SB+1024}, v115\ns_mul_i32 s12, s18, 0x70\ns_sub_u32 s26, s25, s12")
        a(f"s_lshl_b32 s22, s18, 2\ns_add_u32 s22, s22, {SB+1152}\nv_mov_b32 v1, s22")
        osetup()
        a("s_waitcnt lgkmcnt(0)\n" + TAG + "\nv_mov_b32 v147, s7")
    a("s_waitcnt lgkmcnt(0)\ns_mov_b32 s28, s34\ns_mov_b32 s29, s35")
    stamp(1)
    def unit(k, lds, regs, main, first, hook=None):
        a(f"s_add_u32 m0, s27, {lds + k*8192}")
        for j in range(2):
            n = first + j
            if n == 4: a("s_barrier")
            if n == 4 + k0:
                for kk in range(NP, 6): uoff(kk)
                lsetup()
                a("s_barrier"); stamp(3)
                a("s_barrier")
            if n >= 4 + max(k0, win): a(f"s_waitcnt vmcnt({win-1})")
            if hook: hook(n)
            if n >= 4 + k0:
                for cls, w in ((1, win5), (0, wino or win), (2, win6 or win)):
                    if w != win and (main or cls):
                        sk = lab("w"); a(f"s_cmp_lg_u32 s19, {cls}\ns_cbranch_scc1 {sk}\ns_waitcnt vmcnt({w-1})\n{sk}:")
            a(f"buffer_load_dwordx4 v{regs[j]}, s[28:31], s{UO[k]} offen offset:{j*1024} {nt} lds")
    def kflag(cls=None):
        if cls is not None:
            sk = lab("kf"); a(f"s_cmp_lg_u32 s19, {cls}\ns_cbranch_scc1 {sk}")
        a("s_mov_b64 exec, 1\nds_write_b32 v1, v1\ns_mov_b64 exec, -1"); stamp(6)
        if cls is not None: a(f"{sk}:")
    for k in range(4): unit(k, LK, (4, 5), True, 4 + 2*k)
    a("s_cmp_eq_u32 s19, 0\ns_cbranch_scc0 L_xk")
    if wom:
        a("s_lshl_b32 s22, s4, 1\ns_lshr_b32 s23, s5, 3\ns_add_u32 s22, s22, s23\ns_and_b32 s21, s22, 3\ns_lshl_b32 s23, s18, 2\ns_add_u32 s21, s21, s23\ns_lshl_b32 s22, s22, 18\ns_lshl_b32 s23, s21, 13\ns_add_u32 s22, s22, s23\ns_and_b32 s23, s5, 7\ns_lshl_b32 s23, s23, 7\ns_add_u32 s22, s22, s23")
        a(f"s_lshl_b32 s23, s21, 10\ns_add_u32 s23, s23, {LO}\ns_mov_b32 s12, s40\ns_mov_b32 s13, s41\ns_lshr_b32 s20, s20, 1\nv_lshl_add_u32 v12, v8, 10, v9\nv_xor_b32 v12, s20, v12")
        for i in range(8):
            if i == 4: a("s_add_u32 s23, s23, 16384")
            a(f"s_xor_b32 m0, s23, {(i&3)<<10}\ns_xor_b32 s21, s22, {((i&3)<<13) + ((i>>2)<<17)}\ns_waitcnt vmcnt({(wino or win)-1})")
            if i == (wino or win) - 1 + (nh or 0): kflag()
            a(f"buffer_load_dwordx4 v12, s[12:15], s21 offen {nt} lds")
    else:
        a("s_lshl_b32 s22, s4, 19\ns_lshr_b32 s23, s5, 3\ns_lshl_b32 s23, s23, 18\ns_add_u32 s22, s22, s23\ns_mul_i32 s23, s18, 0x12000\ns_add_u32 s22, s22, s23\ns_and_b32 s23, s5, 7\ns_lshl_b32 s23, s23, 7\ns_add_u32 s22, s22, s23")
        a(f"s_mul_i32 s23, s18, 0x2400\ns_add_u32 s23, s23, {LO}\ns_mov_b32 s12, s40\ns_mov_b32 s13, s41")
        a("v_lshl_add_u32 v12, v8, 10, v9\nv_xor_b32 v13, 64, v12")
        for i in range(8):
            a(f"s_xor_b32 m0, s23, {i<<10}\ns_xor_b32 s21, s22, {i<<13}\ns_waitcnt vmcnt({(wino or win)-1})")
            if i == (wino or win) - 1: kflag()
            a(f"buffer_load_dwordx4 v{12+(i>>2)}, s[12:15], s21 offen {nt} lds")
    a("s_mov_b32 s28, s36\ns_mov_b32 s29, s37\ns_branch L_vm")
    a("L_xk:")
    unit(4, LK, (4, 5), False, 99)
    a("s_cmp_eq_u32 s19, 1\ns_cbranch_scc1 L_xv")
    unit(5, LK, (4, 5), False, 99)
    a("s_mov_b32 s28, s36\ns_mov_b32 s29, s37")
    unit(5, LV, (6, 6), False, 99)
    a("L_xv:\ns_mov_b32 s28, s36\ns_mov_b32 s29, s37")
    unit(4, LV, (6, 6), False, 99)
    a("L_vm:")
    assert 5 <= win <= 8
    def hookK(n):
        if n == 100 + win - 5: kflag(2)
        if n == 100 + win - 3: kflag(1)
    for k in range(4): unit(k, LV, (6, 6), True, 100 + 2*k, hookK)
    stamp(2)
    def vread(t):
        for tl in range(2):
            for h in range(2):
                d = VF + 8*t + 4*tl + 2*h
                a(f"ds_read_b64_tr_b16 v[{d}:{d+1}], v{112+tl} offset:{t*8192 + h*1024}")
    def vmfma(t, cnt=None):
        for tl in range(2):
            if cnt is not None: a(lg(cnt.pop(0)))
            d = 40 + 4*tl
            a(f"v_mfma_f32_16x16x32_bf16 v[{d}:{d+3}], v[{VF+8*t+4*tl}:{VF+8*t+4*tl+3}], v[{PF+4*t}:{PF+4*t+3}], v[{d}:{d+3}]")
    def lsum(t): a(f"v_mfma_f32_16x16x32_bf16 v[48:51], v[52:55], v[{PF+4*t}:{PF+4*t+3}], v[48:51]")
    a("s_waitcnt vmcnt(6)\ns_barrier")
    stamp(4); fs("P")
    for t in range(4): a(f"ds_read_b128 v[{PF+4*t}:{PF+4*t+3}], v114 offset:{t*64}")
    a("ds_read_b128 v[56:59], v115\nds_read_b128 v[60:63], v116 offset:48")
    vread(0)
    a("s_cmp_eq_u32 s19, 0\ns_cbranch_scc1 L_nox")
    a(f"ds_read_b128 v[{PF+16}:{PF+19}], v114 offset:256")
    vread(4)
    a("s_cmp_eq_u32 s19, 1\ns_cbranch_scc1 L_x1")
    a(f"ds_read_b128 v[{PF+20}:{PF+23}], v114 offset:320")
    vread(5)
    a("s_waitcnt lgkmcnt(0)"); vmfma(5); lsum(5)
    a("L_x1:\ns_waitcnt lgkmcnt(0)"); vmfma(4); lsum(4)
    a("L_nox:\ns_waitcnt lgkmcnt(0)")
    locflag(60)
    vmfma(0)
    fs("P")
    def stages(x):
        a(f"s_waitcnt vmcnt({4+x})\ns_barrier")
        vread(1)
        a(f"s_waitcnt vmcnt({2+x})\ns_barrier")
        vread(2)
        a(lg(4)); vmfma(1)
        a(f"s_waitcnt vmcnt({x})")
    a("s_cmp_lg_u32 s3, 4\ns_cbranch_scc1 L_noml")
    for t in range(4): lsum(t)
    a("v_max_f32 v56, v56, v57\nv_max3_f32 v144, v56, v58, v59\nv_mov_b32 v145, v48\ns_mov_b64 exec, 15\ns_cmp_eq_u32 s59, 1\ns_cbranch_scc0 L_mlb")
    a("buffer_store_dwordx4 v[144:147], v2, s[8:11], s24 offen offset:1024\ns_branch L_mlc")
    a("L_mlb:\nbuffer_store_dwordx4 v[144:147], v2, s[8:11], s25 offen offset:1024 sc1")
    a("L_mlc:\ns_mov_b64 exec, -1")
    stages(1)
    a("s_branch L_mld\nL_noml:")
    stages(0)
    a("L_mld:\ns_barrier")
    stamp(5); fs("P")
    vread(3)
    a(lg(4)); vmfma(2)
    vmfma(3, [2, 0])
    a("s_mov_b64 exec, s[50:51]\ns_cmp_eq_u32 s59, 1")
    for i in range(4): a(f"v_cvt_pk_bf16_f32 v{12+i}, v{40+2*i}, v{41+2*i}")
    a("s_cbranch_scc0 L_pubb")
    a("buffer_store_dwordx4 v[12:15], v3, s[8:11], s24 offen")
    stamp(7)
    a("s_mov_b64 exec, -1\ns_cmp_lt_u32 s5, 16\ns_cbranch_scc1 L_ofast\ns_branch L_fin")
    a("L_pubb:\nbuffer_store_dwordx4 v[12:15], v3, s[8:11], s25 offen sc1")
    a("s_mov_b64 exec, 1\ns_waitcnt vmcnt(0)\nbuffer_store_dwordx4 v[144:147], v2, s[8:11], s26 offen offset:1088 sc1\ns_mov_b64 exec, -1")
    a("s_cmp_lt_u32 s5, 16\ns_cbranch_scc1 L_oslow\ns_branch L_fin")

    def h5base(sreg, st=13):
        a(f"s_lshl_b32 s{sreg}, s29, 11\ns_and_b32 s{st}, s{sreg}, 0xe000\ns_add_u32 s{sreg}, s{sreg}, s{st}\ns_add_u32 s{sreg}, s{sreg}, {WS_H5}")
    a("L_w8:\ns_load_dwordx2 s[8:9], s[0:1], 96\ns_cmp_lt_u32 s5, 16\ns_cbranch_scc1 L_w8o")
    a(f"s_lshl_b32 s20, s29, 14\ns_and_b32 s21, s4, 3\ns_lshl_b32 s21, s21, 16\ns_add_u32 s20, s20, s21\ns_add_u32 s20, s20, {WS_H3}\ns_lshl_b32 s29, s29, 3\ns_add_u32 s29, s29, s4")
    h5base(21)
    a("s_add_u32 s22, s21, 8192\nv_lshlrev_b32 v13, 7, v10\nv_and_b32 v14, 1, v11\nv_lshl_add_u32 v13, v14, 13, v13\nv_lshlrev_b32 v14, 7, v0\ns_waitcnt lgkmcnt(0)\ns_load_dword s6, s[8:9], 0")
    a("s_barrier\ns_barrier\nbuffer_load_dword v16, v13, s[8:11], s21 offen sc1")
    a(f"s_waitcnt lgkmcnt(0)\n" + TAG + f"\ns_getreg_b32 s6, hwreg(HW_REG_XCC_ID, 0, 4)\ns_lshl_b32 s24, s4, 14\ns_add_u32 s24, s24, {WS_H1}\nv_lshlrev_b32 v4, 9, v0\ns_mov_b32 exec_hi, 0")
    a("s_waitcnt vmcnt(0)\nbuffer_load_dwordx2 v[6:7], v4, s[8:11], s24 offen offset:8 sc1")
    if pol is None:
        a("s_mov_b32 s16, -1\ns_mov_b32 s17, -1\ns_mov_b32 s19, 1\nL_lat:")
        for r, acc in ((21, 16), (22, 17)):
            a(f"s_memtime s[12:13]\ns_waitcnt lgkmcnt(0)\ns_load_dword s23, s[8:9], s{r} glc\ns_waitcnt lgkmcnt(0)\ns_memtime s[14:15]\ns_add_u32 s{r}, s{r}, 512\ns_waitcnt lgkmcnt(0)\ns_sub_u32 s12, s14, s12\ns_min_u32 s{acc}, s{acc}, s12")
        a("s_sub_u32 s19, s19, 1\ns_cbranch_scc0 L_lat\ns_cmp_lt_u32 s17, s16\ns_cselect_b32 s12, 0x2000, 0")
        if stamps: a(f"s_mov_b32 s{streg(1)}, s16\ns_mov_b32 s{streg(2)}, s17")
    else: a(f"s_lshr_b32 s12, s4, 2\ns_xor_b32 s12, s12, {pol}\ns_lshl_b32 s12, s12, 13")
    if t3: a("s_mov_b64 exec, -1\ns_add_u32 s20, s20, s12\nbuffer_load_dword v16, v14, s[8:11], s20 offen sc1\ns_mov_b32 exec_hi, 0")
    a(f"s_mov_b32 s13, {3 if fast else -1}\ns_waitcnt vmcnt({1 if t3 else 0})")
    if fast: a("L_lz:\nv_cmp_ne_u64 vcc, s[6:7], v[6:7]\ns_cbranch_vccz L_lzd\ns_sub_u32 s13, s13, 1\ns_cbranch_scc1 L_lzd\nbuffer_load_dwordx2 v[6:7], v4, s[8:11], s24 offen offset:8 sc1\ns_waitcnt vmcnt(0)\ns_branch L_lz\nL_lzd:")
    a(f"v_mov_b32 v12, s12\nv_mov_b32 v13, s13\nv_mov_b32 v15, {SB+1152}\ns_mov_b64 exec, 1\nds_write_b64 v15, v[12:13] offset:16")
    a("s_waitcnt lgkmcnt(0)\ns_barrier\n" + ("s_barrier\n"*4 + "s_branch L_fin" if stamps else "s_endpgm"))
    a("L_w8o:\ns_waitcnt lgkmcnt(0)\ns_load_dword s6, s[8:9], 0\ns_barrier\ns_barrier\ns_waitcnt lgkmcnt(0)\n" + TAG)
    a(f"v_and_b32 v20, 31, v0\nv_lshlrev_b32 v20, 11, v20\nv_lshrrev_b32 v21, 5, v0\nv_lshl_add_u32 v20, v21, 4, v20\nv_lshlrev_b32 v21, 2, v0\nv_add_u32 v21, {SB+WB}, v21")
    a(f"s_lshl_b32 s22, s4, 16\ns_lshr_b32 s23, s5, 3\ns_lshl_b32 s23, s23, 5\ns_add_u32 s22, s22, s23\ns_add_u32 s22, s22, {WS_H2A+1024}\ns_mov_b32 s16, 0x0fffffff\ns_mov_b32 s17, s16")
    a(f"v_mov_b32 v32, 0xff800000\nv_mov_b32 v33, 0\nv_mov_b32 v1, {SB+1152}")
    a("s_barrier\nds_read_b128 v[24:27], v1 offset:48\ns_waitcnt lgkmcnt(0)")
    locflag(24)
    a(f"s_cmp_eq_u32 s59, 1\ns_cselect_b32 s23, 0, {WS_H2B-WS_H2A}\ns_add_u32 s22, s22, s23\ns_setprio 3")
    a("s_barrier\ns_barrier\ns_barrier")
    poll([[(32, 20, "s22", 0)]], chk_tag, masks=["s[16:17]"])
    stamp(8)
    a(f"v_max_f32_dpp v27, v32, v32 {ROWM[0]} {DPPF}")
    for m in ROWM[1:]: a(f"v_max_f32_dpp v27, v27, v27 {m} {DPPF}")
    a("v_mov_b32 v26, v27\nv_permlane16_swap_b32 v26, v27\nv_max_f32 v27, v27, v26")
    a("v_sub_f32 v32, v32, v27\nv_exp_f32 v28, v32\nv_mul_f32 v30, v33, v28")
    rowred("v_add_f32", [30])
    a("v_mov_b32 v26, v30\nv_permlane16_swap_b32 v26, v30\nv_add_f32 v30, v30, v26")
    a("v_rcp_f32 v30, v30\nv_mul_f32 v28, v28, v30\nds_write_b32 v21, v28")
    stamp(9)
    a(("s_barrier\ns_branch L_finb1" if gat else "s_barrier\ns_branch L_finb") if stamps else "s_endpgm")

    a("L_cw:\ns_setprio 2\ns_load_dword s6, s[8:9], 0\n" + REST)
    a(f"v_lshlrev_b32 v1, 2, v0\nv_cmp_gt_u32 vcc, 16, v0\nv_add_u32 v1, {SB+1024}, v1\nds_write_b32 v1, v4 offset:{WB-1024}\nv_cndmask_b32 v3, 0, -1, vcc\nds_write_b32 v1, v3")
    trsetup()
    a("s_lshl_b32 s12, s3, 5\nv_xor_b32 v15, s12, v14")
    a("v_mov_b32 v63, 0xffff0000\nv_lshlrev_b32 v144, 3, v0\nv_lshlrev_b32 v145, 7, v0")
    zero(32, 8)
    a(f"s_lshl_b32 s22, s4, 12\ns_lshl_b32 s23, s5, 2\ns_add_u32 s22, s22, s23\ns_add_u32 s22, s22, {WS_FL}")
    a(f"v_mov_b32 v1, {SB+1152}\ns_lshl_b32 s12, s3, 2\nv_add_u32 v148, s12, v1")
    def spin4(off, sl):
        L = lab("spin")
        a(f"{L}:")
        if sl: a(f"s_sleep {sl}")
        a(f"ds_read_b128 v[24:27], v1 offset:{off}\ns_waitcnt lgkmcnt(0)\nv_min_u32 v28, v24, v25\nv_min3_u32 v28, v28, v26, v27\nv_cmp_eq_u32 vcc, 0, v28\ns_cbranch_vccnz {L}")
    a(f"s_getreg_b32 s15, hwreg(HW_REG_XCC_ID, 0, 4)\nv_add_u32 v3, {SB}, v2")
    if x0: a("s_cmp_lg_u32 s3, 0\ns_cbranch_scc1 L_nln")
    a("s_waitcnt vmcnt(6)")
    stamp(2)
    layernorm(16, 20, 16, 63)
    if x0: a("ds_write_b128 v3, v[16:19]\nL_nln:")
    a("s_waitcnt lgkmcnt(0)\n" + TAG + "\nv_mov_b32 v58, s15\nv_mov_b32 v59, s7")
    if hb: a("s_lshl_b32 s12, s3, 3\ns_lshr_b32 s12, s7, s12\nv_mov_b32 v60, s12\ns_add_u32 s22, s22, s3")
    a("s_waitcnt vmcnt(2)\ns_barrier")
    stamp(1)
    if x0: a("ds_read_b128 v[16:19], v3")
    trread(2, WF, 15)
    a(lg(4) + "\n" + smf(32, 16, WF) + "\ns_waitcnt lgkmcnt(0)\n" + smf(36, 16, WF+8))
    a(pair(56, 32))
    a(f"v_mov_b32_dpp v57, v56 quad_perm:[1,1,3,3] {DPPF}")
    a("s_waitcnt vmcnt(0)\ns_mov_b64 exec, 0x5555\nbuffer_store_dwordx4 v[56:59], v144, s[8:11], s20 offen")
    PUBB = "s_mov_b64 exec, 0x5555\nbuffer_store_dwordx4 v[56:59], v144, s[8:11], s21 offen sc1\ns_mov_b64 exec, -1"
    if nh is not None: pass
    elif hb: a("s_mov_b32 exec_lo, -1\nbuffer_store_byte v60, v145, s[8:11], s22 offen")
    else: a("s_cmp_lg_u32 s3, 3\ns_cbranch_scc1 L_nohint\ns_mov_b32 exec_lo, " + hex((1 << nrep) - 1) + "\nbuffer_store_dword v59, v145, s[8:11], s22 offen")
    a("L_nohint:\ns_mov_b64 exec, -1")
    a("s_barrier")
    stamp(4)
    a("s_cmp_ge_u32 s5, 28\ns_cbranch_scc1 L_cf")
    if pfo:
        a("s_cmp_lt_u32 s5, 24\ns_cbranch_scc1 L_nopfo\ns_lshl_b32 s12, s4, 19\ns_lshl_b32 s13, s29, 17\ns_add_u32 s12, s12, s13\ns_and_b32 s13, s3, 2\ns_add_u32 s13, s13, s3\ns_lshl_b32 s13, s13, 14\ns_add_u32 s12, s12, s13\ns_add_u32 s12, s12, 0x8180")
        a("v_lshl_add_u32 v4, v10, 10, s12\nglobal_load_dword v151, v4, s[40:41]\nL_nopfo:")
    if pf2 == 1:
        a("s_lshr_b32 s12, s5, 2\ns_cmp_lg_u32 s12, 5\ns_cbranch_scc1 L_nopf2\ns_lshl_b32 s12, s4, 19\ns_lshl_b32 s13, s29, 17\ns_add_u32 s12, s12, s13\ns_and_b32 s13, s3, 2\ns_add_u32 s13, s13, s3\ns_lshl_b32 s13, s13, 14\ns_add_u32 s12, s12, s13\ns_add_u32 s12, s12, 0x180")
        a("v_lshl_add_u32 v4, v10, 10, s12\nglobal_load_dword v151, v4, s[40:41]\nL_nopf2:")
    if pf2 == 2:
        a("s_lshr_b32 s12, s5, 2\ns_cmp_lg_u32 s12, 5\ns_cbranch_scc1 L_nopf2\ns_lshl_b32 s12, s4, 19\ns_lshl_b32 s13, s29, 17\ns_add_u32 s12, s12, s13\ns_lshr_b32 s13, s3, 1\ns_lshl_b32 s13, s13, 16\ns_add_u32 s12, s12, s13\ns_and_b32 s13, s3, 1\ns_lshl_b32 s13, s13, 12\ns_add_u32 s12, s12, s13\ns_add_u32 s12, s12, 0x6000")
        a("v_and_b32 v4, 31, v0\nv_lshl_add_u32 v4, v4, 7, s12\nglobal_load_dword v151, v4, s[40:41]\nL_nopf2:")
    KF, QF, DR = 64, 16, 32
    a("s_mov_b32 s19, 2\ns_cmp_lt_u32 s5, 20\ns_cselect_b32 s19, 4, s19\ns_cmp_lt_u32 s5, 16\ns_cselect_b32 s19, 0, s19")
    a("s_cmp_lt_u32 s3, s19\ns_cselect_b32 s19, 1, 0\ns_mov_b32 s16, 0x00ff00ff\ns_cselect_b32 s16, 0x0fff0fff, s16\ns_mov_b32 s17, s16")
    a(f"s_lshl_b32 s12, s3, 12\ns_add_u32 s12, s12, {LK}\nv_xor_b32 v4, v10, v11\nv_lshlrev_b32 v4, 4, v4\nv_lshl_add_u32 v4, v10, 8, v4\nv_add_u32 v4, s12, v4\nv_xor_b32 v5, 64, v4\nv_xor_b32 v6, 0x80, v4\nv_xor_b32 v7, 0xc0, v4")
    a(f"v_and_b32 v13, 3, v0\nv_mul_u32_u24 v3, {QP}, v13\nv_lshl_add_u32 v3, v11, 4, v3\nv_add_u32 v3, {SB+QB}, v3")
    a(f"v_mul_u32_u24 v60, {PP}, v13\nv_and_b32 v61, 12, v0\nv_lshl_add_u32 v60, v61, 5, v60\nv_lshl_add_u32 v60, v11, 3, v60\ns_lshl_b32 s12, s3, 5\ns_add_u32 s12, s12, {SB+2048}\nv_add_u32 v60, s12, v60")
    a(f"v_lshlrev_b32 v61, 4, v13\nv_add_u32 v61, {SB+1024}, v61\ns_lshl_b32 s12, s3, 2\nv_add_u32 v62, s12, v61")
    a(f"v_mov_b32 v146, {SCALE}\nv_mov_b32 v147, {LOG2E}\nv_add_u32 v15, {LO}, v15")
    a(f"s_lshl_b32 s24, s4, 14\ns_lshl_b32 s25, s3, 10\ns_add_u32 s24, s24, s25\ns_add_u32 s24, s24, {WS_H1}\ns_add_u32 s25, s24, 4096\ns_add_u32 s26, s24, 8192\ns_add_u32 s27, s24, 12288")
    a(f"s_lshl_b32 s12, s4, 12\ns_add_u32 s12, s12, {WS_FL}\ns_add_u32 s12, s12, s8\ns_addc_u32 s13, s9, 0\ns_mov_b32 s6, s7")
    a(f"s_mul_i32 s14, s3, {QP}\ns_add_u32 s14, s14, {SB+QB}\nv_lshl_add_u32 v149, v0, 2, s14")
    if nrep < 32: a("s_cmp_ge_u32 s5, 20\ns_cbranch_scc1 L_hw1\ns_waitcnt vmcnt(0)\nL_hw1:\ns_waitcnt vmcnt(1)")
    stamp(10)
    if nh is None:
        a("s_mov_b32 s58, 0\nL_hint:\ns_add_u32 s59, s58, 64\ns_load_dwordx16 s[80:95], s[12:13], s58\ns_load_dwordx16 s[32:47], s[12:13], s59\ns_add_u32 s58, s58, 128\ns_cmp_ge_u32 s58, " + str(128*nrep) + "\ns_cbranch_scc1 L_hintd\ns_waitcnt lgkmcnt(0)")
        for i in list(range(80, 96, 2)) + list(range(32, 48, 2)): a(f"s_cmp_lg_u64 s[{i}:{i+1}], s[6:7]\ns_cbranch_scc1 L_hint")
        a("L_hintd:\ns_waitcnt lgkmcnt(0)")
    else:
        osetup(); spin4(0, 1)
    stamp(7)
    X = WS_H1 ^ WS_H1B
    def kreads():
        if nh is None: osetup(); spin4(0, 1)
        stamp(6)
        for t in range(3):
            for j in range(4): a(f"ds_read_b128 v[{KF+16*t+4*j}:{KF+16*t+4*j+3}], v{4+j} offset:{t*16384}")
    poll([[(32+8*p, 2, f"s{24+2*p}", 0), (36+8*p, 2, f"s{25+2*p}", 0)] for p in range(2)], chk_tag, mid=kreads,
         each=f"s_cmp_gt_u32 s58, {POLL_MAX-3}\ns_cbranch_scc1 L_qa\n" + PUBB + "\n" + "\n".join(f"s_xor_b32 s{r}, s{r}, {X}" for r in range(24, 28)) + "\nL_qa:")
    stamp(11); fs("S")
    a("v_pk_add_f32 v[32:33], v[32:33], v[36:37]\nv_pk_add_f32 v[40:41], v[40:41], v[44:45]")
    a("v_min3_u32 v35, v34, v38, v42\nv_max3_u32 v34, v34, v38, v42\nv_pk_add_f32 v[32:33], v[32:33], v[40:41]\nv_min3_u32 v35, v35, v46, v58\nv_max3_u32 v34, v34, v46, v58")
    a("v_cvt_pk_bf16_f32 v32, v32, v33\nv_cmp_ne_u32 vcc, v34, v35\nds_write_b32 v149, v32")
    a("s_cmp_lg_u64 vcc, 0\ns_cselect_b32 s14, 2, " + ("1" if fast else "2") + "\nv_mov_b32 v34, s14\ns_mov_b64 exec, 1\nds_write_b32 v148, v34 offset:48\ns_mov_b64 exec, -1")
    fs("S")
    spin4(48, 0)
    stamp(3); fs("S")
    locflag(24)
    a("s_cmp_eq_u32 s59, 1\ns_cbranch_scc1 L_qb\n" + PUBB + "\nL_qb:")
    for j in range(4): a(f"ds_read_b128 v[{QF+4*j}:{QF+4*j+3}], v3 offset:{j*64}")
    def stile(t):
        for j in range(4):
            if t == 0: a(lg(3-j))
            c = "0" if j == 0 else f"v[{DR+4*t}:{DR+4*t+3}]"
            a(f"v_mfma_f32_16x16x32_bf16 v[{DR+4*t}:{DR+4*t+3}], v[{KF+16*t+4*j}:{KF+16*t+4*j+3}], v[{QF+4*j}:{QF+4*j+3}], {c}")
    def pack(t):
        for r in range(4): a(f"v_mov_b32_dpp v{DR+r}, v{DR+4*t+r} quad_perm:[0,1,2,3] row_mask:0xf bank_mask:{hex(1<<t)}")
    stile(0); fs("S"); stile(1)
    a("s_cmp_eq_u32 s19, 0\ns_cbranch_scc1 L_no3")
    stile(2); pack(2)
    a("L_no3:\ns_nop 5")
    pack(1); fs("S")
    S = [DR+r for r in range(4)]
    for x in S: a(f"v_cvt_pk_bf16_f32 v{x}, 0, v{x}")
    for x in S[::2]: a(f"v_pk_mul_f32 v[{x}:{x+1}], v[{x}:{x+1}], v[146:147] op_sel_hi:[1,0]")
    for x in S: a(f"v_cvt_pk_bf16_f32 v{x}, 0, v{x}")
    for x in S[::2]: a(f"v_pk_mul_f32 v[{x}:{x+1}], v[{x}:{x+1}], v[146:147] op_sel:[0,1]")
    a(f"v_max_f32 v20, v{S[0]}, v{S[1]}\nv_max3_f32 v20, v20, v{S[2]}, v{S[3]}")
    a(f"v_max_f32_dpp v20, v20, v20 row_ror:4 {DPPF}\nv_max_f32_dpp v20, v20, v20 row_ror:8 {DPPF}")
    a("v_permlane32_swap_b32 v20, v21\nv_max_f32 v20, v20, v21\nv_permlane16_swap_b32 v20, v21\nv_max_f32 v20, v20, v21")
    a("s_mov_b64 exec, 15\nds_write_b32 v62, v20\ns_mov_b64 exec, -1"); fs("S")
    L = lab("spin")
    a(f"s_movk_i32 s58, {POLL_MAX}\n{L}:\nds_read_b128 v[16:19], v61\ns_sub_u32 s58, s58, 1\ns_waitcnt lgkmcnt(0)\ns_cbranch_scc1 {L}d\nv_max_u32 v21, v16, v17\nv_max_f32 v20, v16, v17\nv_max3_u32 v21, v21, v18, v19\nv_max3_f32 v20, v20, v18, v19\nv_cmp_eq_u32 vcc, -1, v21\ns_cbranch_vccnz {L}\n{L}d:")
    fs("S")
    for x in S[::2]: a(f"v_pk_add_f32 v[{x}:{x+1}], v[{x}:{x+1}], v[20:21] op_sel_hi:[1,0] neg_lo:[0,1] neg_hi:[0,1]")
    for x in S: a(f"v_exp_f32 v{x}, v{x}")
    a(f"v_cvt_pk_bf16_f32 v16, v{S[0]}, v{S[1]}\nv_cvt_pk_bf16_f32 v17, v{S[2]}, v{S[3]}\ns_mov_b64 exec, s[16:17]\nds_write_b64 v60, v[16:17]\ns_mov_b64 exec, -1\ns_waitcnt lgkmcnt(0)")
    fs("S")
    a("s_barrier")
    stamp(5); fs("S")
    a("s_setprio 0\ns_cmp_ge_u32 s5, 16\ns_cbranch_scc1 " + ("L_finb2" if stamps else "L_end"))
    trread(4, WF, 15)
    zero(64, 4)
    a(f"v_and_b32 v12, 1, v0\nv_lshlrev_b32 v12, 6, v12\nv_lshl_add_u32 v12, v11, 4, v12\nv_and_b32 v13, 2, v0\nv_lshl_add_u32 v12, v13, 8, v12")
    a(f"v_add_u32 v12, {SB}, v12\nv_and_b32 v3, 12, v0\nv_lshlrev_b32 v3, 2, v3\nv_lshl_add_u32 v3, v11, 16, v3\nv_and_b32 v4, 1, v0\nv_lshl_add_u32 v3, v4, 13, v3\nv_mov_b32 v83, s7")
    a(f"s_lshl_b32 s31, s4, 12\ns_and_b32 s13, s31, 0x6000\ns_add_u32 s31, s31, s13\ns_lshl_b32 s13, s5, 8\ns_add_u32 s31, s31, s13\ns_lshl_b32 s13, s3, 6\ns_add_u32 s31, s31, s13\ns_add_u32 s31, s31, {WS_H3}\ns_mov_b32 s16, 0x33333333\ns_mov_b32 s17, s16")
    if gat:
        a(f"s_mul_i32 s13, s3, 0xffc0\ns_add_u32 s31, s31, s13\nv_lshlrev_b32 v3, 4, v10\nv_lshl_add_u32 v3, v11, 13, v3\ns_lshl_b32 s12, s3, 5\ns_add_u32 s12, s12, {SB+1280}\nv_lshl_add_u32 v13, v10, 1, s12\nv_lshlrev_b32 v1, 3, v10\nv_add_u32 v1, {SB+1280}, v1")
    a("s_cmp_eq_u32 s59, 1\ns_barrier\ns_barrier\ns_barrier\ns_cbranch_scc0 L_oslow")

    a("L_ofast:"); fs("O")
    if pipe:
        a("s_mov_b64 s[80:81], -1\ns_mov_b64 s[82:83], s[48:49]")
        a(f"s_movk_i32 s58, {POLL_MAX}\nL_h2:\ns_mov_b64 exec, s[80:81]\ns_cbranch_execz L_h2a\nbuffer_load_dwordx4 v[160:163], v152, s[8:11], s44 offen sc1\nL_h2a:\ns_mov_b64 exec, s[82:83]\ns_cbranch_execz L_h2b\nbuffer_load_dwordx4 v[156:159], v152, s[8:11], s45 offen sc1")
        a(f"L_h2b:\ns_mov_b64 exec, -1\ns_sub_u32 s58, s58, 1\ns_cbranch_scc1 L_h2d\ns_waitcnt vmcnt({pipe})")
        a("v_max3_u32 v30, v160, v161, v162\nv_max3_u32 v31, v156, v157, v158\nv_max_u32 v30, v30, v163\nv_max_u32 v31, v31, v159\nv_cmp_eq_u32 s[80:81], -1, v30\nv_cmp_eq_u32 s[82:83], -1, v31\ns_or_b64 s[56:57], s[80:81], s[82:83]\ns_cbranch_scc1 L_h2\nL_h2d:")
    else: poll([[(160, 152, "s44", 0)], [(156, 152, "s45", 0)]], chk_sen, masks=["-1", "s[48:49]"])
    stamp(9); fs("O")
    L = lab("spin")
    a("ds_read2_b32 v[28:29], v154 offset0:0 offset1:8")
    unpack(32, 160, 155); unpack(48, 156, 155)
    a(f"s_movk_i32 s58, {POLL_MAX}\n{L}:\ns_waitcnt lgkmcnt(0)\nv_max_u32 v30, v28, v29\nv_cmp_eq_u32 vcc, -1, v30\ns_cbranch_vccz {L}d\nds_read2_b32 v[28:29], v154 offset0:0 offset1:8\ns_sub_u32 s58, s58, 1\ns_cbranch_scc0 {L}\ns_waitcnt lgkmcnt(0)\n{L}d:")
    fs("O")
    for i in range(8): a(f"v_mul_f32 v{32+i}, v28, v{32+i}")
    for i in (0, 4, 1, 5, 2, 6, 3, 7): a(f"v_fmac_f32 v{32+i}, v29, v{48+i}")
    redscat8(32, (8,))
    fs("O")
    a("v_cvt_pk_bf16_f32 v32, v32, v33\nds_write_b32 v153, v32\ns_cmp_ge_u32 s3, 4\ns_waitcnt lgkmcnt(0)"); fs("O")
    a("s_barrier"); fs("O")
    a("s_cbranch_scc1 " + (("L_finb1" if gat else "L_finb") if stamps else "L_end"))
    for m in range(4): a(f"ds_read_b128 v[{16+4*m}:{19+4*m}], v12 offset:{128*m}")
    fs("O")
    for m in range(4): a(lg(3-m) + "\n" + smf(64, 16+4*m, WF+8*m))
    a("v_add_f32 v20, v64, v65\nv_add_f32 v21, v66, v67\nv_add_f32 v20, v20, v21")
    fs("O")
    if gat:
        a("s_mov_b64 exec, 0xffff\nv_cvt_pk_bf16_f32 v20, v20, v20\nds_write_b16 v13, v20\ns_mov_b32 exec_lo, -1\ns_waitcnt lgkmcnt(0)\ns_barrier")
        a("ds_read_b64 v[80:81], v1\ns_waitcnt lgkmcnt(0)\nbuffer_store_dwordx4 v[80:83], v3, s[8:11], s31 offen sc1")
    else:
        a(f"v_mov_b32_dpp v21, v20 quad_perm:[1,1,3,3] {DPPF}\nv_cvt_pk_bf16_f32 v20, v20, v21\nv_mov_b32_dpp v80, v20 quad_perm:[0,0,0,0] {DPPF}\nv_mov_b32_dpp v81, v20 quad_perm:[2,2,2,2] {DPPF}")
        a("s_mov_b64 exec, s[16:17]\nbuffer_store_dwordx4 v[80:83], v3, s[8:11], s31 offen sc1")
    stamp(10); fs("O")
    a("s_branch L_finb" if stamps else "s_endpgm")
    a("L_oslow:")
    a(f"s_add_u32 s44, s44, {WS_H2B-WS_H2A}\ns_add_u32 s45, s45, {WS_H2B-WS_H2A}")
    a(f"s_lshl_b32 s12, s4, 16\ns_lshl_b32 s13, s46, 15\ns_add_u32 s12, s12, s13\ns_lshl_b32 s13, s18, 4\ns_add_u32 s12, s12, s13\ns_add_u32 s12, s12, {WS_H2B+1088}\ns_add_u32 s13, s12, 16384\nv_lshlrev_b32 v22, 11, v8")
    poll([[(48, 22, "s12", 0)], [(52, 22, "s13", 0)]], chk_tag, masks=["-1", "s[48:49]"])
    a("s_branch L_ofast")

    def xload():
        a("v_lshlrev_b32 v20, 3, v10\nv_lshl_add_u32 v20, v11, 1, v20\ns_lshl_b32 s16, s3, 7\nv_add_u32 v20, s16, v20\nglobal_load_ushort v60, v20, s[32:33]")
    WW, DD = 64, 128
    DA = [128, 132, 136, 140, 152, 156, 160, 164]
    a("L_lf:")
    a("s_lshl_b32 s29, s29, 3\ns_add_u32 s29, s29, s4\ns_cmp_ge_u32 s29, 28\ns_cbranch_scc1 L_end")
    a(f"s_load_dwordx2 s[12:13], s[0:1], 48\ns_load_dwordx2 s[48:49], s[0:1], 64\ns_load_dwordx2 s[8:9], s[0:1], 96\ns_mov_b32 s14, {512*1792*2}")
    a("v_mul_u32_u24 v4, 3584, v8\nv_add_u32 v4, v4, v9\nv_xor_b32 v5, 64, v4")
    a(f"s_mul_i32 s26, s18, {(8 if w1m else 128)*3584}\ns_lshl_b32 s27, s29, 7\ns_add_u32 s26, s26, s27\ns_lshl_b32 s20, s18, {10 if w1m else 14}\ns_add_u32 m0, s20, {LW1}\ns_lshl_b32 s20, s18, 14")
    a("s_waitcnt lgkmcnt(0)\ns_barrier")
    for i in range(16):
        if i == f0:
            trsetup()
            a(f"s_add_u32 s22, s20, {LW2}\nv_add_u32 v24, s22, v14\nv_xor_b32 v25, 32, v24\nv_xor_b32 v26, 64, v24\nv_xor_b32 v27, 0x60, v24")
            a(f"v_and_b32 v13, 1, v0\nv_lshlrev_b32 v13, 6, v13\nv_lshl_add_u32 v13, v11, 4, v13\nv_add_u32 v13, {SB+1280}, v13\nv_mov_b32 v63, 0xffff0000\nv_mov_b32 v22, 0\nv_mov_b32 v30, 0")
            a("s_load_dword s6, s[8:9], 0\ns_load_dwordx2 s[52:53], s[0:1], 80")
            h5base(31, 30)
            a("s_lshl_b32 s30, s18, 9\ns_add_u32 s31, s31, s30\nv_and_b32 v3, 0x1f0, v2\nv_and_b32 v6, 32, v0\nv_lshl_add_u32 v3, v6, 8, v3")
            a("s_waitcnt lgkmcnt(0)\n" + TAG + "\ns_barrier\ns_barrier")
            xload()
        if i >= f0 and fw1[i] != "-": a(f"s_waitcnt vmcnt({int(fw1[i], 16)-1})")
        if w1m: a(f"buffer_load_dwordx4 v{4+(i&1)}, s[12:15], s26 offen {nt} lds\ns_add_u32 s26, s26, {32*3584}\ns_add_u32 m0, m0, 4096")
        else:
            a(f"buffer_load_dwordx4 v{4+((i>>2)&1)}, s[12:15], s26 offen offset:{(i%4)*1024} {nt} lds")
            if i % 4 == 3: a(f"s_add_u32 s26, s26, {8*3584 + 3072}\ns_add_u32 m0, m0, 4096")
            else: a(f"s_add_u32 s26, s26, {8*3584 - 1024}")
    a(f"s_mov_b32 s12, s48\ns_mov_b32 s13, s49\ns_lshl_b32 s26, s29, 16\ns_mul_i32 s20, s18, {0x100 if w2m else 0x2100}\ns_add_u32 s26, s26, s20\ns_mul_i32 s20, s18, {0x4000 if w2m else 0x4400}\ns_add_u32 s20, s20, {LW2}")
    a(("s_bfe_u32 s21, s29, 0x20001" if w2m else "s_and_b32 s21, s29, 3") + "\ns_lshl_b32 s22, s21, 13\ns_xor_b32 s26, s26, s22\ns_lshl_b32 s22, s21, 10\ns_xor_b32 s20, s20, s22")
    a("v_lshl_add_u32 v4, v8, 10, v9\nv_xor_b32 v5, 64, v4")
    for i in range(16):
        rb = ((i>>2) | ((i>>1)&1)<<2) if w2m else i>>1
        a(f"s_xor_b32 m0, s20, {rb<<10}\ns_xor_b32 s21, s26, {(rb<<13) + (i&1)*128}")
        if i & 1: a("s_add_u32 m0, m0, 8192")
        if i < p2: a(f"s_waitcnt vmcnt({int(fw2[i], 16)-1})")
        if i > p2 and w2w: a(f"s_waitcnt vmcnt({w2w-1})")
        if i == p2:
            a(f"s_waitcnt vmcnt({p2})"); stamp(3)
            a("s_barrier"); stamp(4)
        a(f"buffer_load_dwordx4 v{4+(rb>>2)}, s[12:15], s21 offen {nt} lds")
    a("s_branch L_h3")
    a("L_cf:\ns_setprio 0\nv_mov_b32 v22, 0")
    a("s_lshl_b32 s29, s29, 3\ns_add_u32 s29, s29, s4\ns_cmp_ge_u32 s29, 28\ns_cbranch_scc1 L_cf2")
    xload()
    a("s_lshl_b32 s27, s29, 7\ns_lshl_b32 s17, s3, 5\ns_add_u32 s27, s27, s17\nv_lshl_add_u32 v21, v10, 1, s27\nglobal_load_ushort v61, v21, s[46:47]")
    a("s_lshl_b32 s28, s29, 1\ns_add_u32 s28, s28, s3\ns_and_b32 s28, s28, 31\ns_lshr_b32 s19, s28, 2\ns_lshl_b32 s19, s19, 7\ns_and_b32 s26, s28, 3\ns_lshl_b32 s26, s26, 3\ns_add_u32 s19, s19, s26")
    a("v_and_b32 v28, 3, v0\nv_lshlrev_b32 v22, 1, v28\nv_lshl_add_u32 v22, v11, 5, v22\nv_add_u32 v22, s19, v22\nglobal_load_ushort v62, v22, s[50:51]")
    a(f"v_add_u32 v15, {LW1}, v15\nv_add_u32 v12, {SB}, v12\nv_lshl_add_u32 v21, v10, 1, s17\nv_add_u32 v21, {SB+1280}, v21\nv_add_u32 v29, {SB}, v22")
    a(f"v_and_b32 v30, 12, v0\nv_lshlrev_b32 v30, 9, v30\nv_lshl_add_u32 v30, v11, 14, v30\nv_lshl_add_u32 v30, v28, 4, v30")
    for i in range(4): a(f"v_mov_b32 v{16+i}, 0x3f803f80")
    zero(24, 4)
    a("v_mov_b32 v31, v16\nv_mov_b32 v3, 0\nv_mov_b32 v13, 0\nL_cf2:\ns_barrier")
    a("ds_read_b32 v4, v1 offset:20\ns_waitcnt lgkmcnt(0)\nv_cmp_eq_u32 vcc, -1, v4\ns_cbranch_vccz L_cf3\n" + PUBB + "\nL_cf3:\ns_cmp_ge_u32 s29, 28\ns_cbranch_scc1 L_fin")
    def w1frags():
        trread(8, WW, 15)
        a("s_waitcnt lgkmcnt(0)")
        for m in range(8): a(smf(24, 16, WW+8*m))
        a("v_add_f32 v27, v24, v25")
        zero(24, 2)
    w1frags()
    a("s_waitcnt vmcnt(0)")
    a("v_lshlrev_b32 v61, 16, v61\nv_lshlrev_b32 v62, 16, v62")
    a(f"L_h3:\nv_mov_b32 v1, {SB+1152}\nds_read_b32 v1, v1 offset:16")
    for d in DA: zero(d, 4)
    a(f"v_lshlrev_b32 v58, 16, v60\nv_add_u32 v20, {SB}, v20\nv_mov_b32 v56, 0x3f80\nv_mov_b32 v57, 1.0\nv_mov_b32 v39, s7")
    a(f"v_lshlrev_b32 v23, 4, v10\nv_lshl_add_u32 v23, v11, 11, v23\ns_and_b32 s22, s4, 3\ns_lshl_b32 s22, s22, 16\ns_lshl_b32 s23, s3, 8\ns_add_u32 s22, s22, s23\ns_add_u32 s22, s22, {WS_H3}\ns_add_u32 s23, s22, 16384\ns_add_u32 s24, s22, 32768\ns_add_u32 s25, s22, 49152")
    a("s_waitcnt lgkmcnt(0)\nv_add_u32 v23, v23, v1\nv_add_u32 v30, v30, v1\nv_xor_b32 v3, v3, v1")
    a(f"s_waitcnt vmcnt({xw})\ns_barrier")
    stamp(5)
    def w2frags():
        a("s_cmp_lt_u32 s3, 4\ns_cbranch_scc1 L_nw2\ns_waitcnt vmcnt(4)")
        for j in range(8): trread(1, WW + 8*j, 24 + (j&3), (j>>2)*8192)
        a("L_nw2:")
    poll([[(40+4*i, 23, f"s{22+i}", 0)] for i in range(4)], chk_tag, fl=h3ld, mid=w2frags)
    stamp(7); fs("F"); fs("G")
    def sum4(dst, srcs):
        a(f"v_lshlrev_b32 v{dst}, 16, v{srcs[0]}\nv_lshlrev_b32 v{dst+2}, 16, v{srcs[0]+1}\nv_and_b32 v{dst+1}, v63, v{srcs[0]}\nv_and_b32 v{dst+3}, v63, v{srcs[0]+1}")
        for r in srcs[1:]:
            for i in (0, 2, 1, 3): a(f"v_dot2c_f32_bf16 v{dst+i}, v{r+(i>>1)}, v{56+(i&1)}")
        redscat4(dst)
    sum4(32, (40, 44, 48, 52))
    a("v_cvt_pk_bf16_f32 v32, 0, v32\nv_add_f32 v32, v32, v58\nv_cvt_pk_bf16_f32 v32, v32, v32")
    fs("F")
    a("ds_write_b16 v20, v32\ns_cmp_ge_u32 s3, 4")
    a("s_waitcnt lgkmcnt(0)\ns_barrier"); fs("F")
    a("s_cbranch_scc1 L_f2")
    a("ds_read_b128 v[16:19], v12\nds_read_u16 v60, v29"); fl(); a(lg(1))
    fs("F")
    for i in range(4): a(f"v_dot2c_f32_bf16 v24, v{16+i}, v31\nv_dot2c_f32_bf16 v25, v{16+i}, v{16+i}")
    sm = lambda m: smf(DA[m], 16, WW+8*m)
    dp = lambda d, x, y, rows: f"v_add_f32_dpp v{d}, v{x}, v{y} quad_perm:[0,1,2,3] row_mask:{hex(rows)} bank_mask:0xf"
    a(sm(0) + "\n" + sm(2) + "\n" + sm(4))
    a("v_permlane32_swap_b32 v24, v25\nv_add_f32 v24, v24, v25")
    a(sm(6) + "\n" + sm(1))
    a(f"v_add_f32_dpp v24, v24, v24 {ROWM[0]} {DPPF}")
    a(sm(3))
    a("v_add_f32 v32, v128, v129")
    a(f"v_add_f32_dpp v24, v24, v24 {ROWM[1]} {DPPF}")
    a(sm(5))
    a(dp(32, 136, 137, 2))
    a(f"v_add_f32_dpp v24, v24, v24 {ROWM[2]} {DPPF}")
    a(sm(7))
    a(dp(32, 152, 153, 4))
    a(f"v_add_f32_dpp v24, v24, v24 {ROWM[3]} {DPPF}\nv_add_f32 v33, v134, v135")
    a(dp(32, 160, 161, 8))
    a("v_permlane16_swap_b32 v24, v25")
    a(dp(33, 142, 143, 2))
    a("v_add_f32 v24, v24, v25\nv_mul_f32 v24, 0x3b000000, v24")
    a(dp(33, 158, 159, 4))
    a("s_mov_b32 s30, 0x3727c5ac\nv_permlane32_swap_b32 v24, v25")
    a(dp(33, 166, 167, 8))
    a("v_fma_f32 v25, -v24, v24, v25\nv_add_f32 v32, v32, v33\nv_max_f32 v25, 0, v25\nv_cvt_pk_bf16_f32 v25, 0, v25\nv_permlane32_swap_b32 v32, v33\nv_add_f32 v25, s30, v25\nv_add_f32 v32, v32, v33")
    a("v_cvt_pk_bf16_f32 v25, 0, v25\nv_sqrt_f32 v25, v25\nv_permlane16_swap_b32 v32, v33\nv_cvt_pk_bf16_f32 v25, 0, v25\nv_rcp_f32 v25, v25\nv_cvt_pk_bf16_f32 v24, 0, v24\nv_add_f32 v32, v32, v33\nv_fma_f32 v32, -v24, v27, v32")
    fs("F")
    a("v_fma_f32 v32, v32, v25, v61\nv_max_f32 v32, 0, v32\nv_mul_f32 v32, v32, v32\nv_cvt_pk_bf16_f32 v32, v32, v32")
    a("s_mov_b64 exec, 0xffff\nds_write_b16 v21, v32\ns_mov_b64 exec, -1\ns_waitcnt lgkmcnt(0)\ns_barrier")
    stamp(8); fs("F")
    a("s_cmp_ge_u32 s29, 16\ns_cbranch_scc1 L_finb\ns_cmp_ge_u32 s3, 2\ns_cbranch_scc1 L_finb")
    a(f"s_lshl_b32 s26, s28, 6\ns_add_u32 s26, s26, {WS_H5}\ns_add_u32 s27, s26, 65536\nv_lshlrev_b32 v60, 16, v60")
    zero(52, 4)
    a("s_mov_b32 s24, -1\ns_mov_b32 s25, 0xffff\ns_mov_b32 s20, 0x000f000f\ns_mov_b32 s21, 0x000f000f\ns_barrier")
    for i in range(h5d or 0): a("s_nop 15")
    fs("F")
    poll([[(44, 30, "s26", 0)], [(52, 30, "s27", 0)]], chk_tag, masks=["-1", "s[24:25]"], fl=h5ld)
    stamp(10); fs("F")
    sum4(48, (44, 52))
    a(f"v_add_f32_dpp v48, v48, v48 row_ror:4 {DPPF}\nv_add_f32_dpp v48, v48, v48 row_ror:8 {DPPF}")
    a("v_cvt_pk_bf16_f32 v48, 0, v48\nv_add_f32 v48, v48, v62\nv_cvt_pk_bf16_f32 v48, 0, v48\nv_add_f32 v48, v48, v60\nv_cvt_pk_bf16_f32 v48, v48, v48")
    a("s_mov_b64 exec, s[20:21]\nglobal_store_short v22, v48, s[52:53]")
    a("s_cmp_lg_u32 s28, 0\ns_cbranch_scc1 L_noep")
    a("s_add_u32 s6, s6, 1\nv_mov_b32 v49, s6\ns_mov_b64 exec, 1\nbuffer_store_dword v49, v0, s[8:11], 0 offen sc1")
    if amp:
        stamp(11)
        a(f"s_waitcnt lgkmcnt(0)\ns_sub_u32 s26, s{streg(amp[1])}, s{streg(amp[0])}\ns_mul_i32 s26, s26, 10\ns_min_u32 s26, s26, 100000")
        a("s_memrealtime s[24:25]\ns_waitcnt lgkmcnt(0)\nL_amp:\ns_memrealtime s[22:23]\ns_waitcnt lgkmcnt(0)\ns_sub_u32 s27, s22, s24\ns_cmp_lt_u32 s27, s26\ns_cbranch_scc1 L_amp")
    a("L_noep:"); fs("F")
    stamp(11)
    a("s_branch L_fin")
    a("L_f2:\ns_barrier")
    stamp(8); fs("G")
    a("ds_read_b128 v[16:19], v13\ns_waitcnt lgkmcnt(0)")
    fs("G")
    for j in range(8):
        a(smf(DA[j], 16, WW+8*j))
        if j >= 6: a(f"v_add_f32 v{32+2*(j-6)}, v{DA[2*(j-6)]}, v{DA[2*(j-6)]+1}\nv_add_f32 v{33+2*(j-6)}, v{DA[2*(j-6)+1]}, v{DA[2*(j-6)+1]+1}")
    for j in range(4, 8): a(f"v_add_f32_dpp v{28+j}, v{DA[j]}, v{DA[j]+1} quad_perm:[0,1,2,3] row_mask:0xa bank_mask:0xf")
    fs("G")
    a("v_cvt_pk_bf16_f32 v36, v32, v33\nv_cvt_pk_bf16_f32 v37, v34, v35")
    if h5n: a("s_mov_b32 exec_hi, 0\nbuffer_store_dwordx4 v[36:39], v3, s[8:11], s31 offen sc1\ns_not_b64 exec, exec")
    a("buffer_store_dwordx4 v[36:39], v3, s[8:11], s31 offen sc1")
    stamp(9); fs("G")
    if h5wait and h5d is None: a(f"s_waitcnt vmcnt({1 if h5n else 0})")
    fs("G")
    if stamps: a("s_branch L_finb\nL_finb2:\ns_barrier\nL_finb1:\ns_barrier")
    a("L_finb:\ns_barrier")
    a("L_fin:")
    if stamps:
        a("s_mov_b64 exec, -1\ns_memrealtime s[90:91]\ns_waitcnt lgkmcnt(0)\nv_mov_b32 v8, 0")
        for i in range(12): a(f"v_writelane_b32 v8, s{streg(i)}, {i}")
        a("v_writelane_b32 v8, s90, 15")
        a(f"s_mul_i32 s90, s2, 9\ns_add_u32 s90, s90, s3\ns_lshl_b32 s90, s90, 6\ns_add_u32 s90, s90, {WS_ST}")
        a("v_lshlrev_b32 v9, 2, v0\ns_mov_b64 exec, 0xffff\nbuffer_store_dword v8, v9, s[8:11], s90 offen sc1")
    a("L_end:\ns_endpgm")
    a(".fill 512, 4, 0xbf800000")
    a("s_endpgm")
    return wrap(a.text(), 256, 576, LDS_BYTES, 168)

if __name__ == "__main__":
    for a_ in sys.argv[1:]:
        name, kw = a_.split(":") if ":" in a_ else (a_, "")
        open(name + ".s", "w").write(gen(**eval("dict(%s)" % kw)))
```

```python
import sys
from asmlib import *

WS_FL, WS_H1, WS_H1B, WS_H2A, WS_H3, WS_H5, WS_ST, WS_H2B = 0x8000, 0x20000, 0x40000, 0x80000, 0x100000, 0x140000, 0x180000, 0x200000
LK, LV, LO, LW1, LW2, SB = 16384, 65536, 114688, 16384, 81920, 147456
LDS_BYTES = SB + 8192
PP, WB, QB, QP = 464, 1536, 4096, 320
LOG2E, SCALE = 0x3fb8aa3b, 0x3db504f3
POLL_MAX = 20000
KV0 = (65536-4096)*256
OOB = 0x1ffff80

DOC = """
"""

def gen(stamps=False, amp=None, fine=None, fast=True, win=6, k0=6, fw1="3"*9+"-"*7, p2=4, xw=3, t64=True, pipe=0, h5d=None):
    a = Asm()
    nt = "nt"
    streg = lambda i: 60+2*i if i < 10 else 96+2*(i-10)
    def stamp(i):
        if fine == "T":
            if i in (5, 7, 9, 10, 11): a(f"s_memtime s[{streg(i)}:{streg(i)+1}]")
        elif stamps or (amp and i in amp): a(f"s_memrealtime s[{streg(i)}:{streg(i)+1}]")
    DPPF = "row_mask:0xf bank_mask:0xf"
    uid = [0]; stubs = []
    def lab(p):
        uid[0] += 1
        return f"L_{p}_{uid[0]}"
    def lg(n): return f"s_waitcnt lgkmcnt({n})"
    def zero(r, n):
        for i in range(0, n, 2): a(f"v_mov_b64 v[{r+i}:{r+i+1}], 0")
    def redscat4(b):
        a(f"v_permlane32_swap_b32 v{b}, v{b+2}\nv_permlane32_swap_b32 v{b+1}, v{b+3}")
        a(f"v_add_f32 v{b}, v{b}, v{b+2}\nv_add_f32 v{b+1}, v{b+1}, v{b+3}")
        a(f"v_permlane16_swap_b32 v{b}, v{b+1}\nv_add_f32 v{b}, v{b}, v{b+1}")
    def redscat8(b):
        for i in range(4): a(f"v_permlane32_swap_b32 v{b+i}, v{b+4+i}")
        for i in (0, 2, 1, 3): a(f"v_add_f32 v{b+i}, v{b+i}, v{b+4+i}")
        for i in range(2): a(f"v_permlane16_swap_b32 v{b+i}, v{b+2+i}")
        for i in range(2): a(f"v_add_f32 v{b+i}, v{b+i}, v{b+2+i}")
        for i in range(2): a(f"v_add_f32_dpp v{b+i}, v{b+i}, v{b+i} row_ror:8 {DPPF}")
    ROWM = ("quad_perm:[1,0,3,2]", "quad_perm:[2,3,0,1]", "row_half_mirror", "row_mirror")
    def rowred(op, x):
        for m in ROWM: a(f"{op}_dpp v{x}, v{x}, v{x} {m} {DPPF}")
    def unpack(dst, src, msk):
        for i in range(4): a(f"v_lshlrev_b32 v{dst+2*i}, 16, v{src+i}\nv_and_b32 v{dst+2*i+1}, v{msk}, v{src+i}")
    def layernorm(src, f, dst, msk):
        unpack(f, src, msk)
        s1, s2, t1, t2 = f+8, f+9, f+10, f+11
        a(f"v_pk_mul_f32 v[{t1}:{t2}], v[{f}:{f+1}], v[{f}:{f+1}]\nv_pk_add_f32 v[{s1}:{s2}], v[{f}:{f+1}], v[{f+2}:{f+3}]")
        for i in (2, 4, 6):
            a(f"v_pk_fma_f32 v[{t1}:{t2}], v[{f+i}:{f+i+1}], v[{f+i}:{f+i+1}], v[{t1}:{t2}]")
            if i > 2: a(f"v_pk_add_f32 v[{s1}:{s2}], v[{s1}:{s2}], v[{f+i}:{f+i+1}]")
        a(f"v_add_f32 v{s1}, v{s1}, v{s2}\nv_add_f32 v{s2}, v{t1}, v{t2}")
        a(f"v_permlane32_swap_b32 v{s1}, v{s2}\nv_add_f32 v{s1}, v{s1}, v{s2}")
        rowred("v_add_f32", s1)
        a(f"v_mov_b32 v{s2}, v{s1}\nv_permlane16_swap_b32 v{s2}, v{s1}\nv_add_f32 v{s1}, v{s1}, v{s2}")
        a(f"v_mul_f32 v{s1}, 0x3b000000, v{s1}\nv_mov_b32 v{s2}, v{s1}\nv_permlane32_swap_b32 v{s1}, v{s2}")
        a(f"v_fma_f32 v{s2}, -v{s1}, v{s1}, v{s2}\nv_cvt_pk_bf16_f32 v{s1}, 0, v{s1}")
        a(f"v_max_f32 v{s2}, 0, v{s2}\nv_cvt_pk_bf16_f32 v{s2}, 0, v{s2}")
        a(f"v_add_f32 v{s2}, 0x3727c5ac, v{s2}\nv_cvt_pk_bf16_f32 v{s2}, 0, v{s2}")
        a(f"v_sqrt_f32 v{s2}, v{s2}")
        for i in (0, 2): a(f"v_pk_add_f32 v[{f+i}:{f+i+1}], v[{f+i}:{f+i+1}], v[{s1}:{s1+1}] op_sel_hi:[1,0] neg_lo:[0,1] neg_hi:[0,1]")
        a(f"v_cvt_pk_bf16_f32 v{s2}, 0, v{s2}\nv_rcp_f32 v{t1}, v{s2}")
        for i in (4, 6): a(f"v_pk_add_f32 v[{f+i}:{f+i+1}], v[{f+i}:{f+i+1}], v[{s1}:{s1+1}] op_sel_hi:[1,0] neg_lo:[0,1] neg_hi:[0,1]")
        for i in range(8): a(f"v_cvt_pk_bf16_f32 v{f+i}, 0, v{f+i}")
        for i in (0, 2, 4, 6): a(f"v_pk_mul_f32 v[{f+i}:{f+i+1}], v[{f+i}:{f+i+1}], v[{t1}:{t1+1}] op_sel_hi:[1,0]")
        for i in range(4): a(f"v_cvt_pk_bf16_f32 v{dst+i}, v{f+2*i}, v{f+2*i+1}")
    IDX = 150
    def smf(d, act, w): return f"v_smfmac_f32_16x16x64_bf16 v[{d}:{d+3}], v[{act}:{act+3}], v[{w}:{w+7}], v{IDX}"
    dp = lambda d, x, y, rows: f"v_add_f32_dpp v{d}, v{x}, v{y} quad_perm:[0,1,2,3] row_mask:{hex(rows)} bank_mask:0xf"
    def trsetup():
        a("v_and_b32 v14, 8, v0\nv_lshlrev_b32 v15, 3, v14\nv_lshl_add_u32 v14, v14, 9, v15")
        a("v_lshl_add_u32 v14, v11, 9, v14\nv_and_b32 v15, 1, v11\nv_lshl_add_u32 v14, v15, 5, v14")
        a("v_and_b32 v15, 4, v0\nv_lshl_add_u32 v14, v15, 5, v14\nv_and_b32 v15, 3, v0\nv_lshl_add_u32 v14, v15, 3, v14")
        a(f"v_and_b32 v15, 1, v0\nv_mul_u32_u24 v15, 0xaaaa, v15\nv_add_u32 v{IDX}, 0x4444, v15")
    def trread(n, dst, addr, base=0):
        for m in range(n):
            for q in range(4): a(f"ds_read_b64_tr_b16 v[{dst+8*m+2*q}:{dst+8*m+2*q+1}], v{addr} offset:{base + m*8192 + (q>>1)*2048 + (q&1)*256}")
    def poll(loads, chk, last=None, each=None, mid=None):
        L, D = lab("poll"), lab("done")
        n = len(loads)
        m = lambda i: f"s[{80+2*i}:{81+2*i}]"
        ld = lambda dst, voff, soff: f"buffer_load_dwordx4 v[{dst}:{dst+3}], v{voff}, s[8:11], {soff} offen sc1"
        for i, g_ in enumerate(loads):
            if last and i == n-1: a(f"s_mov_b64 exec, {last}")
            a(ld(*g_))
        if last: a("s_mov_b64 exec, -1")
        a(f"s_movk_i32 s58, {POLL_MAX}")
        if mid: mid()
        a(f"s_branch {L}w\n{L}:")
        if each: a(each)
        for i, g_ in enumerate(loads):
            sk = lab("sk")
            a(f"s_mov_b64 exec, {m(i) if n > 1 else 'vcc'}")
            if n > 1: a(f"s_cbranch_execz {sk}")
            a(ld(*g_) + f"\n{sk}:")
        a(f"s_mov_b64 exec, -1\ns_sub_u32 s58, s58, 1\ns_cbranch_scc1 {D}t\n{L}w:\ns_waitcnt vmcnt(0)")
        stubs.append(f"{D}t:\ns_waitcnt vmcnt(0)\ns_branch {D}")
        if n == 1: a(chk(loads[0][0], "vcc") + f"\ns_cbranch_vccnz {L}")
        else:
            for i, g_ in enumerate(loads): a(chk(g_[0], m(i)))
            a(f"s_or_b64 s[56:57], {m(0)}, {m(1)}")
            for i in range(2, n): a(f"s_or_b64 s[56:57], s[56:57], {m(i)}")
            a(f"s_cbranch_scc1 {L}")
        a(f"{D}:")
    chk_tag = lambda d, o: f"v_cmp_ne_u32 {o}, s7, v{d+3}"
    chk_tag2 = (lambda d, o: f"v_cmp_ne_u64 {o}, s[6:7], v[{d+2}:{d+3}]") if t64 else chk_tag
    chk_sen = lambda d, o: f"v_cmp_eq_u32 {o}, -1, v{d+3}"
    TAG = "s_mul_i32 s7, s6, 0x9E3779B1\ns_add_u32 s7, s7, 0x7F4A7C15\ns_bitset0_b32 s7, 31\ns_mul_i32 s6, s6, 0x85EBCA6B\ns_add_u32 s6, s6, 0x165667B1"
    settag = lambda r: f"v_mov_b32 v{r}, s6\nv_mov_b32 v{r+1}, s7"
    WF = 112
    def osetup():
        a(f"s_lshr_b32 s46, s3, 2\ns_lshl_b32 s44, s4, 16\ns_lshl_b32 s45, s46, 15\ns_add_u32 s44, s44, s45\ns_lshr_b32 s45, s5, 3\ns_lshl_b32 s45, s45, 9\ns_add_u32 s44, s44, s45\ns_lshl_b32 s45, s18, 7\ns_add_u32 s44, s44, s45\ns_add_u32 s44, s44, {WS_H2A}\ns_add_u32 s45, s44, 16384")
        a("v_and_b32 v152, 0x70, v2\nv_lshl_add_u32 v152, v8, 11, v152")
        a(f"s_lshl_b32 s47, s46, 9\ns_lshl_b32 s48, s18, 6\ns_add_u32 s47, s47, s48\ns_add_u32 s47, s47, {SB}")
        a("v_and_b32 v153, 32, v0\nv_and_b32 v154, 3, v0\nv_lshl_add_u32 v153, v154, 3, v153\nv_and_b32 v154, 1, v11\nv_lshl_add_u32 v153, v154, 2, v153\nv_and_b32 v154, 4, v0\nv_lshl_add_u32 v153, v154, 6, v153\nv_add_u32 v153, s47, v153")
        a(f"s_lshl_b32 s47, s46, 6\ns_add_u32 s47, s47, {SB+WB}\nv_lshlrev_b32 v154, 5, v154\nv_lshl_add_u32 v154, v8, 2, v154\nv_add_u32 v154, s47, v154")
        a("s_mov_b32 s48, -1\ns_sub_u32 s49, s46, 1\nv_mov_b32 v155, 0xffff0000")
        zero(156, 4)
        if pipe: a("v_mov_b64 v[160:161], -1\nv_mov_b64 v[162:163], -1\ns_mov_b64 exec, s[48:49]\nv_mov_b64 v[156:157], -1\nv_mov_b64 v[158:159], -1\ns_mov_b64 exec, -1")
    def locflag(r):
        a(f"v_or3_b32 v{r}, v{r}, v{r+1}, v{r+2}\nv_or_b32 v{r}, v{r}, v{r+3}\nv_readfirstlane_b32 s59, v{r}")
    def h5base(sreg, st):
        a(f"s_lshl_b32 s{sreg}, s29, 11\ns_and_b32 s{st}, s{sreg}, 0xe000\ns_add_u32 s{sreg}, s{sreg}, s{st}\ns_add_u32 s{sreg}, s{sreg}, {WS_H5}")
    def leave(nbar):
        return f"s_branch L_fin{nbar}" if stamps else "s_endpgm"
    LV_ = lambda nbar: f"L_fin{nbar}" if stamps else "L_end"

    a("; ---- prologue ----")
    if stamps:
        for i in range(1, 12): a(f"s_mov_b32 s{streg(i)}, 0")
    stamp(0)
    a("s_load_dwordx8 s[32:39], s[0:1], 0")
    a("s_cmp_lt_u32 s2, 240\ns_cbranch_scc1 L_npf\nv_cmp_gt_u32 vcc, 88, v0\ns_and_b64 exec, exec, vcc\ns_cbranch_execz L_npf2")
    a("s_getpc_b64 s[16:17]\nv_lshlrev_b32 v3, 7, v0\nglobal_load_dword v20, v3, s[16:17] offset:512\nL_npf2:\ns_mov_b64 exec, -1\nL_npf:")
    a("v_lshrrev_b32 v1, 6, v0\nv_and_b32 v0, 63, v0\ns_cmp_ge_u32 s2, 256\nv_readfirstlane_b32 s3, v1\ns_cbranch_scc1 L_end")
    a("s_and_b32 s4, s2, 7\ns_lshr_b32 s5, s2, 3\ns_and_b32 s18, s3, 3\ns_mov_b32 s10, 0x400000\ns_mov_b32 s11, 0x20000")
    a("v_lshlrev_b32 v2, 4, v0\nv_and_b32 v10, 15, v0\nv_lshrrev_b32 v11, 4, v0")
    a("v_lshrrev_b32 v8, 3, v0\nv_and_b32 v9, 32, v0\nv_and_b32 v3, 0x70, v2\nv_xor_b32 v9, v9, v3")
    a(f"s_and_b32 s29, s5, 3\ns_mov_b32 s14, {512*4096*2}\ns_mov_b32 s15, 0x20000\ns_cmp_lt_u32 s3, 4\ns_cbranch_scc0 L_lw")
    a("s_load_dwordx2 s[8:9], s[0:1], 96")
    a("s_mul_i32 s25, s5, 37\ns_lshr_b32 s25, s25, 8\ns_mul_i32 s24, s25, 7\ns_sub_u32 s24, s5, s24\ns_cmp_ge_u32 s24, 3\ns_addc_u32 s24, s24, 0")
    a("s_cmp_ge_u32 s5, 28\ns_cselect_b32 s25, s29, s25\ns_cselect_b32 s24, 3, s24")
    a("v_lshlrev_b32 v12, 6, v10\nv_lshl_add_u32 v12, v11, 4, v12\ns_lshl_b32 s28, s25, 8\nv_xor_b32 v13, s28, v12")
    a("s_and_b32 s20, s3, 1\ns_lshl_b32 s21, s20, 6\nv_lshl_add_u32 v14, v8, 13, v9\nv_xor_b32 v14, s21, v14")
    a("s_lshl_b32 s26, s25, 20\ns_lshl_b32 s27, s3, 18\ns_add_u32 s26, s26, s27\ns_lshl_b32 s27, s4, 10\ns_add_u32 s26, s26, s27\ns_lshl_b32 s27, s24, 7\ns_add_u32 s26, s26, s27\ns_lshl_b32 m0, s3, 12")
    a(f"s_lshl_b32 s20, s4, 14\ns_lshl_b32 s21, s25, 12\ns_add_u32 s20, s20, s21\ns_lshl_b32 s21, s24, 9\ns_add_u32 s20, s20, s21\ns_lshl_b32 s21, s3, 7\ns_add_u32 s20, s20, s21\ns_add_u32 s21, s20, {WS_H1B}\ns_add_u32 s20, s20, {WS_H1}")
    a("v_mov_b64 v[4:5], -1\nv_mov_b64 v[6:7], -1\nv_lshlrev_b32 v3, 7, v0")
    a("s_cmp_lg_u32 s3, 0\ns_waitcnt lgkmcnt(0)\ns_cbranch_scc1 L_nx\nglobal_load_dwordx4 v[16:19], v13, s[32:33]\nL_nx:\ns_mov_b32 s12, s38\ns_mov_b32 s13, s39")
    stamp(8)
    for i in range(4):
        a(f"buffer_load_dwordx4 v14, s[12:15], s26 offen offset:{i*1024} {nt} lds")
        if i < 3: a(f"s_add_u32 s26, s26, {65536-1024}")
    a(f"s_lshl_b32 s22, s4, 5\ns_add_u32 s22, s22, s5\ns_lshl_b32 s23, s22, 11\ns_add_u32 s23, s23, {WS_H2A}\ns_lshl_b32 s22, s22, 7\ns_add_u32 s22, s22, {WS_FL}\ns_sub_u32 s26, s20, 256")
    a(f"s_cmp_eq_u32 s3, 2\ns_cselect_b32 s26, s26, s22\ns_cselect_b32 s16, 15, 1\ns_cmp_eq_u32 s3, 1\ns_cselect_b32 s26, s23, s26\ns_cselect_b32 s16, 0x1ff, s16\ns_cselect_b32 s23, s23, {OOB}\ns_mov_b32 s17, 0")
    a("buffer_store_dwordx4 v[4:7], v2, s[8:11], s23 offen\ns_mov_b64 exec, s[16:17]\nbuffer_load_dword v159, v3, s[8:11], s26 offen sc1")
    a("s_mov_b64 exec, -1\ns_barrier\ns_branch L_cw")

    a("L_lw:\ns_cmp_eq_u32 s3, 8\ns_cbranch_scc0 L_lw2\ns_sub_u32 s12, s5, 16\ns_cmp_lt_u32 s12, 12\ns_cbranch_scc1 L_end\ns_barrier\ns_branch L_w8")
    a("L_lw2:\ns_cmp_ge_u32 s5, 28\ns_cbranch_scc1 L_lf")
    a("s_mul_i32 s16, s5, 5\ns_sub_u32 s16, s16, 12\ns_mov_b32 s19, 1\ns_mul_i32 s17, s5, 6\ns_sub_u32 s17, s17, 32\ns_cmp_lt_u32 s5, 20\ns_cselect_b32 s16, s17, s16\ns_cselect_b32 s19, 2, s19")
    a("s_lshl_b32 s17, s5, 2\ns_cmp_lt_u32 s5, 16\ns_cselect_b32 s16, s17, s16\ns_cselect_b32 s19, 0, s19")
    a(f"s_lshl_b32 s17, s4, 24\ns_lshl_b32 s27, s18, 15\ns_add_u32 s17, s17, s27\ns_add_u32 s17, s17, {KV0}\ns_lshl_b32 s27, s18, 11\ns_mov_b32 s30, {8*65536*256}\ns_mov_b32 s31, 0x20000")
    UO = [52, 53, 54, 55, 56, 57]
    def uoff(k):
        r = UO[k]
        a(f"s_lshr_b32 s21, s16, 4\ns_lshl_b32 s{r}, s21, 17\ns_xor_b32 s21, s21, s16\ns_and_b32 s21, s21, 3\ns_lshl_b32 s21, s21, 13\ns_add_u32 s{r}, s{r}, s21\ns_and_b32 s21, s16, 12\ns_lshl_b32 s21, s21, 9\ns_add_u32 s{r}, s{r}, s21\ns_add_u32 s{r}, s{r}, s17\ns_add_u32 s16, s16, 1")
    NP = (k0 + 1) // 2
    for k in range(NP): uoff(k)
    a("s_and_b32 s20, s18, 1\ns_lshl_b32 s20, s20, 7\nv_xor_b32 v6, s20, v2\nv_lshlrev_b32 v4, 4, v11\nv_xor_b32 v4, v4, v6\nv_xor_b32 v5, 64, v4\nv_lshlrev_b32 v7, 5, v11\nv_xor_b32 v6, v7, v6")
    VF, PF = 64, 16
    def lsetup():
        a("; addresses of the later phases, while the q partial is being made")
        a("s_load_dwordx2 s[8:9], s[0:1], 96\ns_load_dwordx2 s[40:41], s[0:1], 32\ns_load_dwordx2 s[42:43], s[0:1], 64\ns_load_dwordx2 s[32:33], s[0:1], 48")
        a("v_lshrrev_b32 v112, 2, v10\nv_and_b32 v113, 1, v11\nv_lshl_add_u32 v113, v113, 2, v112\ns_lshl_b32 s12, s18, 1\nv_xor_b32 v113, s12, v113\nv_lshlrev_b32 v113, 5, v113")
        a(f"v_lshl_add_u32 v112, v11, 3, v112\nv_lshl_add_u32 v112, v112, 8, v113\nv_and_b32 v13, 3, v0\nv_lshl_add_u32 v112, v13, 3, v112\nv_add_u32 v112, {LV}, v112\nv_xor_b32 v113, 32, v112")
        a(f"v_mul_u32_u24 v114, {PP}, v13\nv_lshl_add_u32 v114, v11, 4, v114\nv_add_u32 v114, {SB+2048}, v114")
        a("v_and_b32 v3, 1, v0\nv_lshlrev_b32 v3, 6, v3\nv_lshl_add_u32 v3, v11, 4, v3\nv_and_b32 v12, 2, v0\nv_lshl_add_u32 v3, v12, 8, v3")
        a(f"s_lshl_b32 s24, s4, 16\ns_lshl_b32 s25, s5, 11\ns_add_u32 s24, s24, s25\ns_lshl_b32 s25, s18, 7\ns_add_u32 s24, s24, s25\ns_add_u32 s25, s24, {WS_H2B}\ns_add_u32 s24, s24, {WS_H2A}")
        a("s_mov_b32 s50, 0x000f000f\ns_mov_b32 s51, 0x000f000f\ns_waitcnt lgkmcnt(0)\ns_load_dword s6, s[8:9], 0")
        zero(40, 12)
        for i in range(4): a(f"v_mov_b32 v{52+i}, 0x3f803f80")
        a(f"v_mov_b32 v116, {SB+1152}\nv_lshlrev_b32 v115, 4, v13\nv_add_u32 v115, {SB+1024}, v115\ns_mul_i32 s12, s18, 0x70\ns_sub_u32 s26, s25, s12")
        a(f"s_lshl_b32 s22, s18, 2\ns_add_u32 s22, s22, {SB+1152}\nv_mov_b32 v1, s22")
        osetup()
        a("s_sub_u32 s12, s5, 16\ns_mul_i32 s13, s12, 43\ns_lshr_b32 s13, s13, 7\ns_mul_i32 s22, s13, 3\ns_sub_u32 s34, s12, s22\ns_add_u32 s12, s34, 1")
        a("s_lshl_b32 s13, s13, 3\ns_add_u32 s13, s13, s4\ns_bfe_u32 s22, s13, 0x20001\ns_xor_b32 s12, s12, s22\ns_lshl_b32 s12, s12, 13\ns_cmp_lt_u32 s13, 28\ns_cselect_b32 s38, -1, 0\ns_mov_b32 s39, 0\ns_lshl_b32 s23, s13, 7\ns_lshl_b32 s13, s13, 16\ns_add_u32 s12, s12, s13")
        a("s_lshr_b32 s13, s18, 1\ns_lshl_b32 s13, s13, 15\ns_add_u32 s12, s12, s13\ns_and_b32 s13, s18, 1\ns_lshl_b32 s13, s13, 12\ns_add_u32 s12, s12, s13\nv_lshl_add_u32 v117, v0, 7, s12")
        a(f"v_xor_b32 v119, 0x6000, v117\ns_lshl_b32 s12, s34, 2\ns_add_u32 s12, s12, s18\ns_mul_i32 s12, s12, {32*3584}\ns_add_u32 s12, s12, s23\ns_add_u32 s12, s12, {256*3584}\nv_mul_u32_u24 v120, 3584, v0\nv_add_u32 v120, s12, v120")
        a("s_waitcnt lgkmcnt(0)\n" + TAG + "\n" + settag(146))
    a("s_waitcnt lgkmcnt(0)\ns_mov_b32 s28, s34\ns_mov_b32 s29, s35")
    stamp(1)
    def unit(k, lds, regs, first, hook=None):
        a(f"s_add_u32 m0, s27, {lds + k*8192}")
        for j in range(2):
            n = first + j
            if n == 0: a("s_barrier")
            if n == k0:
                for kk in range(NP, 6): uoff(kk)
                lsetup()
                a("s_barrier"); stamp(3)
                a("s_barrier")
            if n >= max(k0, win): a(f"s_waitcnt vmcnt({win-1})")
            if hook: hook(n)
            a(f"buffer_load_dwordx4 v{regs[j]}, s[28:31], s{UO[k]} offen offset:{j*1024} {nt} lds")
    def kflag(cls=None):
        if cls is not None:
            sk = lab("kf"); a(f"s_cmp_lg_u32 s19, {cls}\ns_cbranch_scc1 {sk}")
        a("s_mov_b64 exec, 1\nds_write_b32 v1, v1\ns_mov_b64 exec, -1"); stamp(6)
        if cls is not None: a(f"{sk}:")
    assert 5 <= win <= 7 and k0 < 8
    for k in range(4): unit(k, LK, (4, 5), 2*k)
    a("s_cmp_eq_u32 s19, 0\ns_cbranch_scc0 L_xk")
    a("s_lshl_b32 s22, s4, 1\ns_lshr_b32 s23, s5, 3\ns_add_u32 s22, s22, s23\ns_and_b32 s21, s22, 3\ns_lshl_b32 s23, s18, 2\ns_add_u32 s21, s21, s23\ns_lshl_b32 s22, s22, 18\ns_lshl_b32 s23, s21, 13\ns_add_u32 s22, s22, s23\ns_and_b32 s23, s5, 7\ns_lshl_b32 s23, s23, 7\ns_add_u32 s22, s22, s23")
    a(f"s_lshl_b32 s23, s21, 10\ns_add_u32 s23, s23, {LO}\ns_mov_b32 s12, s40\ns_mov_b32 s13, s41\ns_lshr_b32 s20, s20, 1\nv_lshl_add_u32 v12, v8, 10, v9\nv_xor_b32 v12, s20, v12")
    for i in range(8):
        if i == 4: a("s_add_u32 s23, s23, 16384")
        a(f"s_xor_b32 m0, s23, {(i&3)<<10}\ns_xor_b32 s21, s22, {((i&3)<<13) + ((i>>2)<<17)}\ns_waitcnt vmcnt({win-1})")
        if i == win - 1: kflag()
        a(f"buffer_load_dwordx4 v12, s[12:15], s21 offen {nt} lds")
    a("s_mov_b32 s28, s36\ns_mov_b32 s29, s37\ns_branch L_vm")
    a("L_xk:")
    unit(4, LK, (4, 5), 99)
    a("s_cmp_eq_u32 s19, 1\ns_cbranch_scc1 L_xv")
    unit(5, LK, (4, 5), 99)
    a("s_mov_b32 s28, s36\ns_mov_b32 s29, s37")
    unit(5, LV, (6, 6), 99)
    a("L_xv:\ns_mov_b32 s28, s36\ns_mov_b32 s29, s37")
    unit(4, LV, (6, 6), 99)
    a("L_vm:")
    def hookK(n):
        if n == 100 + win - 5: kflag(2)
        if n == 100 + win - 3: kflag(1)
    for k in range(4): unit(k, LV, (6, 6), 100 + 2*k, hookK)
    stamp(2)
    def vread(t):
        for tl in range(2):
            for h in range(2):
                d = VF + 8*t + 4*tl + 2*h
                a(f"ds_read_b64_tr_b16 v[{d}:{d+1}], v{112+tl} offset:{t*8192 + h*1024}")
    def vmfma(t, cnt=None):
        for tl in range(2):
            if cnt is not None: a(lg(cnt.pop(0)))
            d = 40 + 4*tl
            a(f"v_mfma_f32_16x16x32_bf16 v[{d}:{d+3}], v[{VF+8*t+4*tl}:{VF+8*t+4*tl+3}], v[{PF+4*t}:{PF+4*t+3}], v[{d}:{d+3}]")
    def lsum(t): a(f"v_mfma_f32_16x16x32_bf16 v[48:51], v[52:55], v[{PF+4*t}:{PF+4*t+3}], v[48:51]")
    a("s_waitcnt vmcnt(6)\ns_barrier")
    stamp(4)
    for t in range(4): a(f"ds_read_b128 v[{PF+4*t}:{PF+4*t+3}], v114 offset:{t*64}")
    a("ds_read_b128 v[56:59], v115\nds_read_b128 v[60:63], v116 offset:48")
    vread(0)
    a("s_cmp_eq_u32 s19, 0\ns_cbranch_scc1 L_nox")
    a(f"ds_read_b128 v[{PF+16}:{PF+19}], v114 offset:256")
    vread(4)
    a("s_cmp_eq_u32 s19, 1\ns_cbranch_scc1 L_x1")
    a(f"ds_read_b128 v[{PF+20}:{PF+23}], v114 offset:320")
    vread(5)
    a("s_waitcnt lgkmcnt(0)"); vmfma(5); lsum(5)
    a("L_x1:\ns_waitcnt lgkmcnt(0)"); vmfma(4); lsum(4)
    a("L_nox:\ns_waitcnt lgkmcnt(0)")
    locflag(60)
    vmfma(0)
    def stages(x):
        a(f"s_waitcnt vmcnt({4+x})\ns_barrier")
        vread(1)
        a(f"s_waitcnt vmcnt({2+x})\ns_barrier")
        vread(2)
        a(lg(4)); vmfma(1)
        a(f"s_waitcnt vmcnt({x})")
    a("s_cmp_lg_u32 s3, 4\ns_cbranch_scc1 L_noml")
    for t in range(4): lsum(t)
    a("v_max_f32 v56, v56, v57\nv_max3_f32 v144, v56, v58, v59\nv_mov_b32 v145, v48\ns_mov_b64 exec, 15\ns_cmp_eq_u32 s59, 1\ns_cbranch_scc0 L_mlb")
    a("buffer_store_dwordx4 v[144:147], v2, s[8:11], s24 offen offset:1024\ns_branch L_mlc")
    a("L_mlb:\nbuffer_store_dwordx4 v[144:147], v2, s[8:11], s25 offen offset:1024 sc1")
    a("L_mlc:\ns_mov_b64 exec, -1")
    stages(1)
    a("s_branch L_mld\nL_noml:")
    stages(0)
    a("L_mld:\ns_barrier")
    stamp(5)
    vread(3)
    a(lg(4)); vmfma(2)
    vmfma(3, [2, 0])
    a("s_mov_b64 exec, s[50:51]\ns_cmp_eq_u32 s59, 1")
    for i in range(4): a(f"v_cvt_pk_bf16_f32 v{12+i}, v{40+2*i}, v{41+2*i}")
    a("s_cbranch_scc0 L_pubb")
    a("buffer_store_dwordx4 v[12:15], v3, s[8:11], s24 offen")
    stamp(7)
    a("s_mov_b64 exec, -1\ns_cmp_lt_u32 s5, 16\ns_cbranch_scc1 L_ofast")
    a(f"s_mov_b64 exec, s[38:39]\ns_cbranch_execz {LV_(0)}")
    a("s_cmp_lg_u32 s34, 2\ns_cbranch_scc1 L_hz1\nglobal_load_dword v121, v119, s[42:43]\ns_branch L_hz2\nL_hz1:\nglobal_load_dword v121, v120, s[32:33]\nL_hz2:")
    a("global_load_dword v118, v117, s[42:43]\n" + leave(0))
    a("L_pubb:\nbuffer_store_dwordx4 v[12:15], v3, s[8:11], s25 offen sc1")
    a("s_mov_b64 exec, 1\ns_waitcnt vmcnt(0)\nbuffer_store_dwordx4 v[144:147], v2, s[8:11], s26 offen offset:1088 sc1\ns_mov_b64 exec, -1")
    a("s_cmp_lt_u32 s5, 16\ns_cbranch_scc1 L_oslow\n" + leave(0))

    a("; ---- wave 8 ----")
    a("L_w8:\ns_load_dwordx2 s[8:9], s[0:1], 96\ns_waitcnt lgkmcnt(0)\ns_load_dword s6, s[8:9], 0\ns_cmp_lt_u32 s5, 16\ns_cbranch_scc1 L_w8o")
    a(f"s_lshl_b32 s20, s29, 14\ns_and_b32 s21, s4, 3\ns_lshl_b32 s21, s21, 16\ns_add_u32 s20, s20, s21\ns_add_u32 s20, s20, {WS_H3}\ns_lshl_b32 s29, s29, 3\ns_add_u32 s29, s29, s4")
    h5base(21, 13)
    a("s_add_u32 s22, s21, 8192\nv_lshlrev_b32 v13, 7, v10\nv_and_b32 v14, 1, v11\nv_lshl_add_u32 v13, v14, 13, v13\nv_lshlrev_b32 v14, 7, v0\ns_waitcnt lgkmcnt(0)")
    a("s_barrier\ns_barrier\nbuffer_load_dword v16, v13, s[8:11], s21 offen sc1")
    a(TAG + f"\ns_getreg_b32 s6, hwreg(HW_REG_XCC_ID, 0, 4)\ns_lshl_b32 s24, s4, 14\ns_add_u32 s24, s24, {WS_H1}\nv_lshlrev_b32 v4, 9, v0\ns_mov_b32 exec_hi, 0")
    a("s_waitcnt vmcnt(0)\nbuffer_load_dwordx2 v[6:7], v4, s[8:11], s24 offen offset:8 sc1")
    a("s_mov_b32 s16, -1\ns_mov_b32 s17, -1\ns_mov_b32 s19, 1\nL_lat:")
    for r, acc in ((21, 16), (22, 17)):
        a(f"s_memtime s[12:13]\ns_waitcnt lgkmcnt(0)\ns_load_dword s23, s[8:9], s{r} glc\ns_waitcnt lgkmcnt(0)\ns_memtime s[14:15]\ns_add_u32 s{r}, s{r}, 512\ns_waitcnt lgkmcnt(0)\ns_sub_u32 s12, s14, s12\ns_min_u32 s{acc}, s{acc}, s12")
    a("s_sub_u32 s19, s19, 1\ns_cbranch_scc0 L_lat\ns_cmp_lt_u32 s17, s16\ns_cselect_b32 s12, 0x2000, 0")
    if stamps: a(f"s_mov_b32 s{streg(1)}, s16\ns_mov_b32 s{streg(2)}, s17")
    a("s_mov_b64 exec, -1\ns_add_u32 s20, s20, s12\nbuffer_load_dword v16, v14, s[8:11], s20 offen sc1\ns_mov_b32 exec_hi, 0")
    a(f"s_mov_b32 s13, {3 if fast else -1}\ns_waitcnt vmcnt(1)")
    if fast: a("L_lz:\nv_cmp_ne_u64 vcc, s[6:7], v[6:7]\ns_cbranch_vccz L_lzd\ns_sub_u32 s13, s13, 1\ns_cbranch_scc1 L_lzd\nbuffer_load_dwordx2 v[6:7], v4, s[8:11], s24 offen offset:8 sc1\ns_waitcnt vmcnt(0)\ns_branch L_lz\nL_lzd:")
    a(f"v_mov_b32 v12, s12\nv_mov_b32 v13, s13\nv_mov_b32 v15, {SB+1152}\ns_mov_b64 exec, 1\nds_write_b64 v15, v[12:13] offset:16")
    a("s_waitcnt lgkmcnt(0)\ns_barrier\n" + leave(4))
    a("L_w8o:\ns_waitcnt lgkmcnt(0)\ns_barrier\ns_barrier\n" + TAG)
    a(f"v_and_b32 v20, 31, v0\nv_lshlrev_b32 v20, 11, v20\nv_lshrrev_b32 v21, 5, v0\nv_lshl_add_u32 v20, v21, 4, v20\nv_lshlrev_b32 v21, 2, v0\nv_add_u32 v21, {SB+WB}, v21")
    a(f"s_lshl_b32 s22, s4, 16\ns_lshr_b32 s23, s5, 3\ns_lshl_b32 s23, s23, 5\ns_add_u32 s22, s22, s23\ns_add_u32 s22, s22, {WS_H2A+1024}\ns_mov_b32 s16, 0x0fffffff\ns_mov_b32 s17, s16")
    a(f"v_mov_b32 v32, 0xff800000\nv_mov_b32 v33, 0\nv_mov_b32 v1, {SB+1152}\n" + settag(34))
    a("s_barrier\nds_read_b128 v[24:27], v1 offset:48\ns_waitcnt lgkmcnt(0)")
    locflag(24)
    a(f"s_cmp_eq_u32 s59, 1\ns_cselect_b32 s23, 0, {WS_H2B-WS_H2A}\ns_add_u32 s22, s22, s23\ns_setprio 3")
    a("s_barrier\ns_barrier\ns_barrier")
    poll([(32, 20, "s22")], chk_tag2, last="s[16:17]")
    stamp(8)
    a(f"v_max_f32_dpp v27, v32, v32 {ROWM[0]} {DPPF}")
    for m in ROWM[1:]: a(f"v_max_f32_dpp v27, v27, v27 {m} {DPPF}")
    a("v_mov_b32 v26, v27\nv_permlane16_swap_b32 v26, v27\nv_max_f32 v27, v27, v26")
    a("v_sub_f32 v32, v32, v27\nv_exp_f32 v28, v32\nv_mul_f32 v30, v33, v28")
    rowred("v_add_f32", 30)
    a("v_mov_b32 v26, v30\nv_permlane16_swap_b32 v26, v30\nv_add_f32 v30, v30, v26")
    a("v_rcp_f32 v30, v30\nv_mul_f32 v28, v28, v30\nds_write_b32 v21, v28")
    stamp(9)
    a(leave(3))

    a("L_cw:\ns_setprio 2\ns_load_dword s6, s[8:9], 0\ns_load_dwordx8 s[40:47], s[0:1], 32\ns_load_dwordx4 s[48:51], s[0:1], 64\ns_load_dwordx2 s[52:53], s[0:1], 80")
    a(f"v_lshlrev_b32 v1, 2, v0\nv_cmp_gt_u32 vcc, 16, v0\nv_add_u32 v1, {SB+1024}, v1\nds_write_b32 v1, v4 offset:{WB-1024}\nv_cndmask_b32 v3, 0, -1, vcc\nds_write_b32 v1, v3")
    trsetup()
    a("s_lshl_b32 s12, s3, 5\nv_xor_b32 v15, s12, v14")
    a("v_mov_b32 v63, 0xffff0000\nv_lshlrev_b32 v144, 3, v0\nv_lshlrev_b32 v145, 7, v0")
    zero(32, 8)
    a(f"s_lshl_b32 s22, s4, 12\ns_lshl_b32 s23, s5, 2\ns_add_u32 s22, s22, s23\ns_add_u32 s22, s22, {WS_FL}")
    a(f"v_mov_b32 v1, {SB+1152}\ns_lshl_b32 s12, s3, 2\nv_add_u32 v148, s12, v1")
    def spin4(off):
        L = lab("spin")
        a(f"{L}:\nds_read_b128 v[24:27], v1 offset:{off}\ns_waitcnt lgkmcnt(0)\nv_min_u32 v28, v24, v25\nv_min3_u32 v28, v28, v26, v27\nv_cmp_eq_u32 vcc, 0, v28\ns_cbranch_vccnz {L}")
    a(f"s_getreg_b32 s15, hwreg(HW_REG_XCC_ID, 0, 4)\nv_add_u32 v3, {SB}, v2\ns_cmp_lg_u32 s3, 0\ns_cbranch_scc1 L_nln\ns_waitcnt vmcnt(6)")
    stamp(2)
    layernorm(16, 20, 16, 63)
    a("ds_write_b128 v3, v[16:19]\nL_nln:")
    a("s_waitcnt lgkmcnt(0)\n" + TAG + "\nv_mov_b32 v58, s15\nv_mov_b32 v59, s7")
    a("s_waitcnt vmcnt(2)\ns_barrier")
    stamp(1)
    a("ds_read_b128 v[16:19], v3")
    trread(2, WF, 15)
    a(lg(4) + "\n" + smf(32, 16, WF) + "\ns_waitcnt lgkmcnt(0)\n" + smf(36, 16, WF+8))
    a("v_pk_add_f32 v[56:57], v[32:33], v[38:39]\nv_add_f32 v56, v56, v57")
    a(f"v_mov_b32_dpp v57, v56 quad_perm:[1,1,3,3] {DPPF}")
    a("s_waitcnt vmcnt(0)\ns_mov_b64 exec, 0x5555\nbuffer_store_dwordx4 v[56:59], v144, s[8:11], s20 offen")
    PUBB = "s_mov_b64 exec, 0x5555\nbuffer_store_dwordx4 v[56:59], v144, s[8:11], s21 offen sc1\ns_mov_b64 exec, -1"
    a("s_cmp_lg_u32 s3, 1\ns_cbranch_scc1 L_nohint\ns_mov_b32 exec_lo, -1\nbuffer_store_dword v59, v145, s[8:11], s22 offen")
    a("L_nohint:\ns_mov_b64 exec, -1\ns_barrier")
    stamp(4)
    a("s_cmp_ge_u32 s5, 28\ns_cbranch_scc1 L_cf")
    a("s_sub_u32 s13, s5, 20\ns_cbranch_scc1 L_nopfo\ns_lshl_b32 s12, s4, 19\ns_lshr_b32 s14, s13, 1\ns_lshl_b32 s14, s14, 17\ns_add_u32 s12, s12, s14\ns_and_b32 s13, s13, 1\ns_lshl_b32 s13, s13, 14\ns_add_u32 s12, s12, s13\ns_lshl_b32 s13, s3, 12\ns_add_u32 s12, s12, s13\ns_add_u32 s12, s12, 0x180")
    a("v_and_b32 v4, 3, v0\nv_lshl_add_u32 v4, v4, 15, s12\nv_and_b32 v5, 12, v0\nv_lshl_add_u32 v4, v5, 8, v4\nglobal_load_dword v151, v4, s[40:41]\nL_nopfo:")
    KF, QF, DR = 64, 16, 32
    a("s_mov_b32 s19, 2\ns_cmp_lt_u32 s5, 20\ns_cselect_b32 s19, 4, s19\ns_cmp_lt_u32 s5, 16\ns_cselect_b32 s19, 0, s19")
    a("s_cmp_lt_u32 s3, s19\ns_cselect_b32 s19, 1, 0\ns_mov_b32 s16, 0x00ff00ff\ns_cselect_b32 s16, 0x0fff0fff, s16\ns_mov_b32 s17, s16")
    a(f"s_lshl_b32 s12, s3, 12\ns_add_u32 s12, s12, {LK}\nv_xor_b32 v4, v10, v11\nv_lshlrev_b32 v4, 4, v4\nv_lshl_add_u32 v4, v10, 8, v4\nv_add_u32 v4, s12, v4\nv_xor_b32 v5, 64, v4\nv_xor_b32 v6, 0x80, v4\nv_xor_b32 v7, 0xc0, v4")
    a(f"v_and_b32 v13, 3, v0\nv_mul_u32_u24 v3, {QP}, v13\nv_lshl_add_u32 v3, v11, 4, v3\nv_add_u32 v3, {SB+QB}, v3")
    a(f"v_mul_u32_u24 v60, {PP}, v13\nv_and_b32 v61, 12, v0\nv_lshl_add_u32 v60, v61, 5, v60\nv_lshl_add_u32 v60, v11, 3, v60\ns_lshl_b32 s12, s3, 5\ns_add_u32 s12, s12, {SB+2048}\nv_add_u32 v60, s12, v60")
    a(f"v_lshlrev_b32 v61, 4, v13\nv_add_u32 v61, {SB+1024}, v61\ns_lshl_b32 s12, s3, 2\nv_add_u32 v62, s12, v61")
    a(f"v_mov_b32 v146, {SCALE}\nv_mov_b32 v147, {LOG2E}\nv_add_u32 v15, {LO}, v15")
    a(f"s_lshl_b32 s24, s4, 14\ns_lshl_b32 s25, s3, 10\ns_add_u32 s24, s24, s25\ns_add_u32 s24, s24, {WS_H1}\ns_add_u32 s25, s24, 4096\ns_add_u32 s26, s24, 8192\ns_add_u32 s27, s24, 12288")
    a(f"s_lshl_b32 s12, s4, 12\ns_add_u32 s12, s12, {WS_FL}\ns_add_u32 s12, s12, s8\ns_addc_u32 s13, s9, 0\ns_mov_b32 s22, s7\ns_mov_b32 s23, s7")
    a(f"s_mul_i32 s14, s3, {QP}\ns_add_u32 s14, s14, {SB+QB}\nv_lshl_add_u32 v149, v0, 2, s14")
    a("s_mov_b32 s58, 0\nL_hint:\ns_add_u32 s59, s58, 64\ns_load_dwordx16 s[80:95], s[12:13], s58\ns_load_dwordx16 s[32:47], s[12:13], s59\ns_add_u32 s58, s58, 128\ns_cmp_ge_u32 s58, 4096\ns_cbranch_scc1 L_hintd\ns_waitcnt lgkmcnt(0)")
    for i in list(range(80, 96, 2)) + list(range(32, 48, 2)): a(f"s_cmp_lg_u64 s[{i}:{i+1}], s[22:23]\ns_cbranch_scc1 L_hint")
    a("L_hintd:\ns_waitcnt lgkmcnt(0)")
    stamp(7)
    X = WS_H1 ^ WS_H1B
    def kreads():
        osetup(); spin4(0)
        stamp(6)
        for t in range(3):
            for j in range(4): a(f"ds_read_b128 v[{KF+16*t+4*j}:{KF+16*t+4*j+3}], v{4+j} offset:{t*16384}")
    poll([(32+4*p, 2, f"s{24+p}") for p in range(4)], chk_tag, mid=kreads,
         each=f"s_cmp_gt_u32 s58, {POLL_MAX-3}\ns_cbranch_scc1 L_qa\n" + PUBB + "\n" + "\n".join(f"s_xor_b32 s{r}, s{r}, {X}" for r in range(24, 28)) + "\nL_qa:")
    stamp(11)
    a("v_pk_add_f32 v[32:33], v[32:33], v[36:37]\nv_pk_add_f32 v[40:41], v[40:41], v[44:45]")
    a("v_min3_u32 v35, v34, v38, v42\nv_max3_u32 v34, v34, v38, v42\nv_pk_add_f32 v[32:33], v[32:33], v[40:41]\nv_min3_u32 v35, v35, v46, v58\nv_max3_u32 v34, v34, v46, v58")
    a("v_cvt_pk_bf16_f32 v32, v32, v33\nv_cmp_ne_u32 vcc, v34, v35\nds_write_b32 v149, v32")
    a("s_cmp_lg_u64 vcc, 0\ns_cselect_b32 s14, 2, " + ("1" if fast else "2") + "\nv_mov_b32 v34, s14\ns_mov_b64 exec, 1\nds_write_b32 v148, v34 offset:48\ns_mov_b64 exec, -1")
    spin4(48)
    stamp(3)
    locflag(24)
    a("s_cmp_eq_u32 s59, 1\ns_cbranch_scc1 L_qb\n" + PUBB + "\nL_qb:")
    for j in range(4): a(f"ds_read_b128 v[{QF+4*j}:{QF+4*j+3}], v3 offset:{j*64}")
    def stile(t):
        for j in range(4):
            if t == 0: a(lg(3-j))
            c = "0" if j == 0 else f"v[{DR+4*t}:{DR+4*t+3}]"
            a(f"v_mfma_f32_16x16x32_bf16 v[{DR+4*t}:{DR+4*t+3}], v[{KF+16*t+4*j}:{KF+16*t+4*j+3}], v[{QF+4*j}:{QF+4*j+3}], {c}")
    def pack(t):
        for r in range(4): a(f"v_mov_b32_dpp v{DR+r}, v{DR+4*t+r} quad_perm:[0,1,2,3] row_mask:0xf bank_mask:{hex(1<<t)}")
    stile(0); stile(1)
    a("s_cmp_eq_u32 s19, 0\ns_cbranch_scc1 L_no3")
    stile(2); pack(2)
    a("L_no3:\ns_nop 5")
    pack(1)
    S = [DR+r for r in range(4)]
    for x in S: a(f"v_cvt_pk_bf16_f32 v{x}, 0, v{x}")
    for x in S[::2]: a(f"v_pk_mul_f32 v[{x}:{x+1}], v[{x}:{x+1}], v[146:147] op_sel_hi:[1,0]")
    for x in S: a(f"v_cvt_pk_bf16_f32 v{x}, 0, v{x}")
    for x in S[::2]: a(f"v_pk_mul_f32 v[{x}:{x+1}], v[{x}:{x+1}], v[146:147] op_sel:[0,1]")
    a(f"v_max_f32 v20, v{S[0]}, v{S[1]}\nv_max3_f32 v20, v20, v{S[2]}, v{S[3]}")
    a(f"v_max_f32_dpp v20, v20, v20 row_ror:4 {DPPF}\nv_max_f32_dpp v20, v20, v20 row_ror:8 {DPPF}")
    a("v_permlane32_swap_b32 v20, v21\nv_max_f32 v20, v20, v21\nv_permlane16_swap_b32 v20, v21\nv_max_f32 v20, v20, v21")
    a("s_mov_b64 exec, 15\nds_write_b32 v62, v20\ns_mov_b64 exec, -1")
    L = lab("spin")
    a(f"s_movk_i32 s58, {POLL_MAX}\n{L}:\nds_read_b128 v[16:19], v61\ns_sub_u32 s58, s58, 1\ns_waitcnt lgkmcnt(0)\ns_cbranch_scc1 {L}d\nv_max_u32 v21, v16, v17\nv_max_f32 v20, v16, v17\nv_max3_u32 v21, v21, v18, v19\nv_max3_f32 v20, v20, v18, v19\nv_cmp_eq_u32 vcc, -1, v21\ns_cbranch_vccnz {L}\n{L}d:")
    for x in S[::2]: a(f"v_pk_add_f32 v[{x}:{x+1}], v[{x}:{x+1}], v[20:21] op_sel_hi:[1,0] neg_lo:[0,1] neg_hi:[0,1]")
    for x in S: a(f"v_exp_f32 v{x}, v{x}")
    a(f"v_cvt_pk_bf16_f32 v16, v{S[0]}, v{S[1]}\nv_cvt_pk_bf16_f32 v17, v{S[2]}, v{S[3]}\ns_mov_b64 exec, s[16:17]\nds_write_b64 v60, v[16:17]\ns_mov_b64 exec, -1\ns_waitcnt lgkmcnt(0)")
    a("s_barrier")
    stamp(5)
    a(f"s_setprio 0\ns_cmp_ge_u32 s5, 16\ns_cbranch_scc1 {LV_(3)}")
    trread(4, WF, 15)
    zero(64, 4)
    a(f"v_and_b32 v12, 1, v0\nv_lshlrev_b32 v12, 6, v12\nv_lshl_add_u32 v12, v11, 4, v12\nv_and_b32 v13, 2, v0\nv_lshl_add_u32 v12, v13, 8, v12\nv_add_u32 v12, {SB}, v12")
    a(f"s_lshl_b32 s31, s4, 12\ns_and_b32 s13, s31, 0x6000\ns_add_u32 s31, s31, s13\ns_lshl_b32 s13, s5, 8\ns_add_u32 s31, s31, s13\ns_lshl_b32 s13, s3, 16\ns_add_u32 s31, s31, s13\ns_add_u32 s31, s31, {WS_H3}")
    a(f"v_lshlrev_b32 v3, 4, v10\nv_lshl_add_u32 v3, v11, 13, v3\ns_lshl_b32 s12, s3, 5\ns_add_u32 s12, s12, {SB+1280}\nv_lshl_add_u32 v13, v10, 1, s12\nv_lshlrev_b32 v1, 3, v10\nv_add_u32 v1, {SB+1280}, v1\n" + settag(82))
    a("s_cmp_eq_u32 s59, 1\ns_barrier\ns_barrier\ns_barrier\ns_cbranch_scc0 L_oslow")

    a("L_ofast:")
    if pipe:
        a(f"s_mov_b64 s[80:81], -1\ns_mov_b64 s[82:83], s[48:49]\ns_movk_i32 s58, {POLL_MAX}\nL_h2:\ns_mov_b64 exec, s[80:81]\ns_cbranch_execz L_h2a\nbuffer_load_dwordx4 v[160:163], v152, s[8:11], s44 offen sc1\nL_h2a:\ns_mov_b64 exec, s[82:83]\ns_cbranch_execz L_h2b\nbuffer_load_dwordx4 v[156:159], v152, s[8:11], s45 offen sc1")
        a(f"L_h2b:\ns_mov_b64 exec, -1\ns_sub_u32 s58, s58, 1\ns_cbranch_scc1 L_h2d\ns_waitcnt vmcnt({pipe})")
        a("v_max3_u32 v30, v160, v161, v162\nv_max3_u32 v31, v156, v157, v158\nv_max_u32 v30, v30, v163\nv_max_u32 v31, v31, v159\nv_cmp_eq_u32 s[80:81], -1, v30\nv_cmp_eq_u32 s[82:83], -1, v31\ns_or_b64 s[56:57], s[80:81], s[82:83]\ns_cbranch_scc1 L_h2\nL_h2d:")
    else: poll([(160, 152, "s44"), (156, 152, "s45")], chk_sen, last="s[48:49]")
    stamp(9)
    L = lab("spin")
    a("ds_read2_b32 v[28:29], v154 offset0:0 offset1:8")
    unpack(32, 160, 155); unpack(48, 156, 155)
    a(f"s_waitcnt lgkmcnt(0)\nv_max_u32 v30, v28, v29\nv_cmp_eq_u32 vcc, -1, v30\ns_cbranch_vccnz {L}\n{L}d:")
    stubs.append(f"{L}:\ns_movk_i32 s58, {POLL_MAX}\n{L}l:\nds_read2_b32 v[28:29], v154 offset0:0 offset1:8\ns_sub_u32 s58, s58, 1\ns_waitcnt lgkmcnt(0)\ns_cbranch_scc1 {L}d\nv_max_u32 v30, v28, v29\nv_cmp_eq_u32 vcc, -1, v30\ns_cbranch_vccnz {L}l\ns_branch {L}d")
    for i in range(8): a(f"v_mul_f32 v{32+i}, v28, v{32+i}")
    for i in (0, 4, 1, 5, 2, 6, 3, 7): a(f"v_fmac_f32 v{32+i}, v29, v{48+i}")
    redscat8(32)
    a(f"v_cvt_pk_bf16_f32 v32, v32, v33\nds_write_b32 v153, v32\ns_cmp_ge_u32 s3, 4\ns_waitcnt lgkmcnt(0)\ns_barrier\ns_cbranch_scc1 {LV_(2)}")
    for m in range(4): a(f"ds_read_b128 v[{16+4*m}:{19+4*m}], v12 offset:{128*m}")
    for m in range(4): a(lg(3-m) + "\n" + smf(64, 16+4*m, WF+8*m))
    a("s_mov_b64 exec, 0xffff\nv_add_f32 v20, v64, v65\nv_add_f32 v21, v66, v67\nv_add_f32 v20, v20, v21")
    a("v_cvt_pk_bf16_f32 v20, v20, v20\nds_write_b16 v13, v20\ns_mov_b32 exec_lo, -1\ns_waitcnt lgkmcnt(0)\ns_barrier")
    a("ds_read_b64 v[80:81], v1\ns_waitcnt lgkmcnt(0)\nbuffer_store_dwordx4 v[80:83], v3, s[8:11], s31 offen sc1")
    stamp(10)
    a(leave(1))
    for t in stubs: a(t)
    stubs.clear()
    a("L_oslow:")
    a(f"s_add_u32 s44, s44, {WS_H2B-WS_H2A}\ns_add_u32 s45, s45, {WS_H2B-WS_H2A}")
    a(f"s_lshl_b32 s12, s4, 16\ns_lshl_b32 s13, s46, 15\ns_add_u32 s12, s12, s13\ns_lshl_b32 s13, s18, 4\ns_add_u32 s12, s12, s13\ns_add_u32 s12, s12, {WS_H2B+1088}\ns_add_u32 s13, s12, 16384\nv_lshlrev_b32 v22, 11, v8\n" + settag(54))
    poll([(48, 22, "s12"), (52, 22, "s13")], chk_tag2, last="s[48:49]")
    a("s_branch L_ofast")

    def xload():
        a("v_lshlrev_b32 v20, 3, v10\nv_lshl_add_u32 v20, v11, 1, v20\ns_lshl_b32 s16, s3, 7\nv_add_u32 v20, s16, v20\nglobal_load_ushort v60, v20, s[32:33]")
    WW = 64
    DA = [128, 132, 136, 140, 152, 156, 160, 164]
    a("L_lf:\ns_lshl_b32 s29, s29, 3\ns_add_u32 s29, s29, s4\ns_cmp_ge_u32 s29, 28\ns_cbranch_scc1 L_end\ns_barrier")
    a(f"s_load_dwordx2 s[12:13], s[0:1], 48\ns_load_dwordx2 s[48:49], s[0:1], 64\ns_load_dwordx2 s[8:9], s[0:1], 96\ns_load_dwordx2 s[52:53], s[0:1], 80\ns_mov_b32 s14, {512*1792*2}")
    a("v_mul_u32_u24 v4, 3584, v8\nv_add_u32 v4, v4, v9\nv_xor_b32 v5, 64, v4")
    a(f"s_mul_i32 s26, s18, {8*3584}\ns_lshl_b32 s27, s29, 7\ns_add_u32 s26, s26, s27\ns_lshl_b32 s20, s18, 10\ns_add_u32 m0, s20, {LW1}\ns_lshl_b32 s20, s18, 14")
    trsetup()
    a("s_waitcnt lgkmcnt(0)\ns_load_dword s6, s[8:9], 0")
    a(f"s_add_u32 s22, s20, {LW2}\nv_add_u32 v24, s22, v14\nv_xor_b32 v25, 32, v24\nv_xor_b32 v26, 64, v24\nv_xor_b32 v27, 0x60, v24")
    a(f"v_and_b32 v13, 1, v0\nv_lshlrev_b32 v13, 6, v13\nv_lshl_add_u32 v13, v11, 4, v13\nv_add_u32 v13, {SB+1280}, v13\nv_mov_b32 v63, 0xffff0000\nv_mov_b32 v22, 0\nv_mov_b32 v30, 0")
    h5base(31, 30)
    a("s_lshl_b32 s30, s18, 9\ns_add_u32 s31, s31, s30\nv_and_b32 v3, 0x1f0, v2\nv_and_b32 v6, 32, v0\nv_lshl_add_u32 v3, v6, 8, v3")
    a("s_waitcnt lgkmcnt(0)\ns_add_u32 s30, s6, 1\nv_mov_b32 v61, s30\n" + TAG + "\ns_barrier\ns_barrier")
    xload()
    for i in range(16):
        if fw1[i] != "-": a(f"s_waitcnt vmcnt({int(fw1[i], 16)-1})")
        a(f"buffer_load_dwordx4 v{4+(i&1)}, s[12:15], s26 offen {nt} lds\ns_add_u32 s26, s26, {32*3584}\ns_add_u32 m0, m0, 4096")
    a(f"s_mov_b32 s12, s48\ns_mov_b32 s13, s49\ns_lshl_b32 s26, s29, 16\ns_lshl_b32 s21, s18, 8\ns_add_u32 s26, s26, s21\ns_add_u32 s20, s20, {LW2}")
    a("s_bfe_u32 s21, s29, 0x20001\ns_lshl_b32 s22, s21, 13\ns_xor_b32 s26, s26, s22\ns_lshl_b32 s22, s21, 10\ns_xor_b32 s20, s20, s22")
    a("v_lshl_add_u32 v4, v8, 10, v9\nv_xor_b32 v5, 64, v4")
    for i in range(16):
        rb = (i>>2) | ((i>>1)&1)<<2
        a(f"s_xor_b32 m0, s20, {rb<<10}\ns_xor_b32 s21, s26, {(rb<<13) + (i&1)*128}")
        if i & 1: a("s_add_u32 m0, m0, 8192")
        if i < p2: a("s_waitcnt vmcnt(7)")
        if i == p2:
            a(f"s_waitcnt vmcnt({p2})"); stamp(3)
            a("s_barrier"); stamp(4)
        a(f"buffer_load_dwordx4 v{4+(rb>>2)}, s[12:15], s21 offen {nt} lds")
    a("s_branch L_h3")
    a("L_cf:\ns_setprio 0\nv_mov_b32 v22, 0\ns_lshl_b32 s29, s29, 3\ns_add_u32 s29, s29, s4\ns_cmp_ge_u32 s29, 28\ns_cbranch_scc1 L_cf2")
    xload()
    a("s_lshl_b32 s27, s29, 7\ns_lshl_b32 s17, s3, 5\ns_add_u32 s27, s27, s17\nv_lshl_add_u32 v21, v10, 1, s27\nglobal_load_ushort v61, v21, s[46:47]")
    a("s_lshl_b32 s19, s4, 7\ns_lshl_b32 s26, s3, 3\ns_add_u32 s19, s19, s26")
    a("v_and_b32 v28, 3, v0\nv_lshlrev_b32 v22, 1, v28\nv_lshl_add_u32 v22, v11, 5, v22\nv_add_u32 v22, s19, v22\nglobal_load_ushort v62, v22, s[50:51]")
    a(f"v_add_u32 v15, {LW1}, v15\nv_add_u32 v12, {SB}, v12\nv_lshl_add_u32 v21, v10, 1, s17\nv_add_u32 v21, {SB+1280}, v21\nv_add_u32 v29, {SB}, v22")
    a("v_and_b32 v30, 12, v0\nv_lshlrev_b32 v30, 9, v30\nv_lshl_add_u32 v30, v11, 14, v30\nv_lshl_add_u32 v30, v28, 4, v30")
    for i in range(4): a(f"v_mov_b32 v{16+i}, 0x3f803f80")
    zero(24, 4)
    a("v_mov_b32 v31, v16\nv_mov_b32 v3, 0\nv_mov_b32 v13, 0\nL_cf2:\ns_barrier")
    a("ds_read_b32 v4, v1 offset:20\ns_waitcnt lgkmcnt(0)\nv_cmp_eq_u32 vcc, -1, v4\ns_cbranch_vccz L_cf3\n" + PUBB + f"\nL_cf3:\ns_cmp_ge_u32 s29, 28\ns_cbranch_scc1 {LV_(0)}")
    trread(8, WW, 15)
    a("s_waitcnt lgkmcnt(0)")
    for m in range(8): a(smf(24, 16, WW+8*m))
    a("v_add_f32 v27, v24, v25")
    zero(24, 2)
    a("s_waitcnt vmcnt(0)\nv_lshlrev_b32 v61, 16, v61\nv_lshlrev_b32 v62, 16, v62")
    a(f"L_h3:\nv_mov_b32 v1, {SB+1152}\nds_read_b32 v1, v1 offset:16")
    for d in DA: zero(d, 4)
    a(f"v_lshlrev_b32 v58, 16, v60\nv_add_u32 v20, {SB}, v20\nv_mov_b32 v56, 0x3f80\nv_mov_b32 v57, 1.0\n" + settag(38))
    a(f"v_lshlrev_b32 v23, 4, v10\nv_lshl_add_u32 v23, v11, 11, v23\ns_and_b32 s22, s4, 3\ns_lshl_b32 s22, s22, 16\ns_lshl_b32 s23, s3, 8\ns_add_u32 s22, s22, s23\ns_add_u32 s22, s22, {WS_H3}\ns_add_u32 s23, s22, 16384\ns_add_u32 s24, s22, 32768\ns_add_u32 s25, s22, 49152")
    a("s_waitcnt lgkmcnt(0)\nv_add_u32 v23, v23, v1\nv_add_u32 v30, v30, v1")
    a(f"s_waitcnt vmcnt({xw})\ns_barrier")
    stamp(5)
    def w2frags():
        a("s_cmp_lt_u32 s3, 4\ns_cbranch_scc1 L_nw2\ns_waitcnt vmcnt(4)")
        for j in range(8): trread(1, WW + 8*j, 24 + (j&3), (j>>2)*8192)
        a("L_nw2:")
    poll([(40+4*i, 23, f"s{22+i}") for i in range(4)], chk_tag2, mid=w2frags)
    stamp(7)
    def sum4(dst, srcs):
        a(f"v_lshlrev_b32 v{dst}, 16, v{srcs[0]}\nv_lshlrev_b32 v{dst+2}, 16, v{srcs[0]+1}\nv_and_b32 v{dst+1}, v63, v{srcs[0]}\nv_and_b32 v{dst+3}, v63, v{srcs[0]+1}")
        for r in srcs[1:]:
            for i in (0, 2, 1, 3): a(f"v_dot2c_f32_bf16 v{dst+i}, v{r+(i>>1)}, v{56+(i&1)}")
        redscat4(dst)
    sum4(32, (40, 44, 48, 52))
    a("v_cvt_pk_bf16_f32 v32, 0, v32\nv_add_f32 v32, v32, v58\nv_cvt_pk_bf16_f32 v32, v32, v32")
    a("ds_write_b16 v20, v32\ns_cmp_ge_u32 s3, 4\ns_waitcnt lgkmcnt(0)\ns_barrier\ns_cbranch_scc1 L_f2")
    a("ds_read_b128 v[16:19], v12\nds_read_u16 v60, v29\n" + lg(1))
    for i in range(4): a(f"v_dot2c_f32_bf16 v24, v{16+i}, v31\nv_dot2c_f32_bf16 v25, v{16+i}, v{16+i}")
    sm = lambda m: smf(DA[m], 16, WW+8*m)
    a(sm(0) + "\n" + sm(2) + "\n" + sm(4))
    a("v_permlane32_swap_b32 v24, v25\nv_add_f32 v24, v24, v25")
    a(sm(6) + "\n" + sm(1))
    a(f"v_add_f32_dpp v24, v24, v24 {ROWM[0]} {DPPF}")
    a(sm(3))
    a(f"v_add_f32 v32, v128, v129\nv_add_f32_dpp v24, v24, v24 {ROWM[1]} {DPPF}")
    a(sm(5))
    a(dp(32, 136, 137, 2) + f"\nv_add_f32_dpp v24, v24, v24 {ROWM[2]} {DPPF}")
    a(sm(7))
    a(dp(32, 152, 153, 4) + f"\nv_add_f32_dpp v24, v24, v24 {ROWM[3]} {DPPF}\nv_add_f32 v33, v134, v135")
    a(dp(32, 160, 161, 8) + "\nv_permlane16_swap_b32 v24, v25\n" + dp(33, 142, 143, 2))
    a("v_add_f32 v24, v24, v25\nv_mul_f32 v24, 0x3b000000, v24\n" + dp(33, 158, 159, 4))
    a("s_mov_b32 s30, 0x3727c5ac\nv_permlane32_swap_b32 v24, v25\n" + dp(33, 166, 167, 8))
    a("v_fma_f32 v25, -v24, v24, v25\nv_add_f32 v32, v32, v33\nv_max_f32 v25, 0, v25\nv_cvt_pk_bf16_f32 v25, 0, v25\nv_permlane32_swap_b32 v32, v33\nv_add_f32 v25, s30, v25\nv_add_f32 v32, v32, v33")
    a("v_cvt_pk_bf16_f32 v25, 0, v25\nv_sqrt_f32 v25, v25\nv_permlane16_swap_b32 v32, v33\nv_cvt_pk_bf16_f32 v25, 0, v25\nv_rcp_f32 v25, v25\nv_cvt_pk_bf16_f32 v24, 0, v24\nv_add_f32 v32, v32, v33\nv_fma_f32 v32, -v24, v27, v32")
    a("v_fma_f32 v32, v32, v25, v61\nv_max_f32 v32, 0, v32\nv_mul_f32 v32, v32, v32\nv_cvt_pk_bf16_f32 v32, v32, v32")
    a(f"s_mov_b64 exec, 0xffff\nds_write_b16 v21, v32\ns_mov_b64 exec, -1\ns_cmp_ge_u32 s29, 8\ns_waitcnt lgkmcnt(0)\ns_barrier\ns_cbranch_scc1 {LV_(1)}")
    stamp(8)
    a(f"s_lshl_b32 s26, s4, 8\ns_lshl_b32 s27, s3, 6\ns_add_u32 s26, s26, s27\ns_add_u32 s26, s26, {WS_H5}\ns_add_u32 s27, s26, 65536\nv_lshlrev_b32 v60, 16, v60\nv_mov_b64 v[52:53], 0\n" + settag(54))
    a("s_mov_b32 s24, -1\ns_mov_b32 s25, 0xffff\ns_mov_b32 s20, 0x000f000f\ns_mov_b32 s21, 0x000f000f\ns_barrier")
    for i in range(h5d or 0): a("s_nop 15")
    poll([(44, 30, "s26"), (52, 30, "s27")], chk_tag2, last="s[24:25]")
    stamp(10)
    sum4(48, (44, 52))
    a(f"v_add_f32_dpp v48, v48, v48 row_ror:4 {DPPF}\nv_add_f32_dpp v48, v48, v48 row_ror:8 {DPPF}")
    a("v_cvt_pk_bf16_f32 v48, 0, v48\nv_add_f32 v48, v48, v62\nv_cvt_pk_bf16_f32 v48, 0, v48\nv_add_f32 v48, v48, v60\nv_cvt_pk_bf16_f32 v48, v48, v48")
    a("s_mov_b64 exec, s[20:21]\nglobal_store_short v22, v48, s[52:53]")
    stamp(11)
    if amp:
        a(f"s_or_b32 s26, s29, s3\ns_cbranch_scc1 L_end\ns_waitcnt lgkmcnt(0)\ns_sub_u32 s26, s{streg(amp[1])}, s{streg(amp[0])}\ns_mul_i32 s26, s26, 10\ns_min_u32 s26, s26, 100000")
        a("s_memrealtime s[24:25]\ns_waitcnt lgkmcnt(0)\nL_amp:\ns_memrealtime s[22:23]\ns_waitcnt lgkmcnt(0)\ns_sub_u32 s27, s22, s24\ns_cmp_lt_u32 s27, s26\ns_cbranch_scc1 L_amp")
    a(leave(0))
    a("L_f2:\ns_cmp_lg_u32 s3, 5\ns_cbranch_scc1 L_f4")
    a("s_cmp_lg_u32 s2, 251\ns_cbranch_scc1 L_f3\ns_mov_b64 exec, 1\nbuffer_store_dword v61, v0, s[8:11], 0 offen sc1\ns_mov_b64 exec, -1")
    a("L_f3:\ns_cmp_lg_u32 s5, 29\ns_cbranch_scc1 L_f4\nbuffer_wbl2 sc1")
    a("L_f4:\ns_barrier")
    stamp(8)
    a("ds_read_b128 v[16:19], v13\ns_waitcnt lgkmcnt(0)")
    for j in range(8):
        a(smf(DA[j], 16, WW+8*j))
        if j >= 6: a(f"v_add_f32 v{32+2*(j-6)}, v{DA[2*(j-6)]}, v{DA[2*(j-6)]+1}\nv_add_f32 v{33+2*(j-6)}, v{DA[2*(j-6)+1]}, v{DA[2*(j-6)+1]+1}")
    for j in range(4, 8): a(dp(28+j, DA[j], DA[j]+1, 10))
    a("v_cvt_pk_bf16_f32 v36, v32, v33\nv_cvt_pk_bf16_f32 v37, v34, v35\nbuffer_store_dwordx4 v[36:39], v3, s[8:11], s31 offen sc1")
    stamp(9)
    if h5d is None: a("s_waitcnt vmcnt(0)")
    a("s_barrier\n" + leave(0))
    for t in stubs: a(t)
    if stamps:
        a("L_fin4:\ns_barrier\nL_fin3:\ns_barrier\nL_fin2:\ns_barrier\nL_fin1:\ns_barrier\nL_fin0:")
        a("s_mov_b64 exec, -1\ns_memrealtime s[90:91]\ns_waitcnt lgkmcnt(0)\nv_mov_b32 v8, 0")
        for i in range(12): a(f"v_writelane_b32 v8, s{streg(i)}, {i}")
        a("v_writelane_b32 v8, s90, 15")
        a(f"s_mul_i32 s90, s2, 9\ns_add_u32 s90, s90, s3\ns_lshl_b32 s90, s90, 6\ns_add_u32 s90, s90, {WS_ST}")
        a("v_lshlrev_b32 v9, 2, v0\ns_mov_b64 exec, 0xffff\nbuffer_store_dword v8, v9, s[8:11], s90 offen sc1")
    a("L_end:\ns_endpgm")
    a(".fill 384, 4, 0xbf810000")
    return wrap(DOC.lstrip("\n") + a.text(), 256, 576, LDS_BYTES, 168)

if __name__ == "__main__":
    for a_ in sys.argv[1:]:
        name, kw = a_.split(":") if ":" in a_ else (a_, "")
        open(name + ".s", "w").write(gen(**eval("dict(%s)" % kw)))
```

```python
import sys
from asmlib import *

WS_FL, WS_H1, WS_H1B, WS_H2A, WS_H3, WS_H5, WS_ST, WS_H2B = 0x8000, 0x20000, 0x40000, 0x80000, 0x100000, 0x140000, 0x180000, 0x200000
LK, LV, LO, LW1, LW2, SB = 16384, 65536, 114688, 16384, 81920, 147456
LDS_BYTES = SB + 8192
PP, WB, QB, QP = 464, 1536, 4096, 320
LOG2E, SCALE = 0x3fb8aa3b, 0x3db504f3
POLL_MAX = 20000
KV0 = (65536-4096)*256
OOB = 0x1ffff80

DOC = """
"""

def gen(stamps=False, amp=None, fine=None, fast=True, win=6, k0=6, fw1="3"*9+"-"*7, p2=4, xw=3, t64=True, pipe=0, h5d=None, dly0=0, pf0=2, wb0=0, exp=""):
    a = Asm()
    nt = "nt"
    streg = lambda i: 60+2*i if i < 10 else 96+2*(i-10)
    def stamp(i):
        if fine == "T":
            if i in (5, 7, 9, 10, 11): a(f"s_memtime s[{streg(i)}:{streg(i)+1}]")
        elif stamps or (amp and i in amp): a(f"s_memrealtime s[{streg(i)}:{streg(i)+1}]")
    DPPF = "row_mask:0xf bank_mask:0xf"
    uid = [0]; stubs = []
    def lab(p):
        uid[0] += 1
        return f"L_{p}_{uid[0]}"
    def lg(n): return f"s_waitcnt lgkmcnt({n})"
    def zero(r, n):
        for i in range(0, n, 2): a(f"v_mov_b64 v[{r+i}:{r+i+1}], 0")
    def redscat4(b):
        a(f"v_permlane32_swap_b32 v{b}, v{b+2}\nv_permlane32_swap_b32 v{b+1}, v{b+3}")
        a(f"v_add_f32 v{b}, v{b}, v{b+2}\nv_add_f32 v{b+1}, v{b+1}, v{b+3}")
        a(f"v_permlane16_swap_b32 v{b}, v{b+1}\nv_add_f32 v{b}, v{b}, v{b+1}")
    def redscat8(b):
        for i in range(4): a(f"v_permlane32_swap_b32 v{b+i}, v{b+4+i}")
        for i in (0, 2, 1, 3): a(f"v_add_f32 v{b+i}, v{b+i}, v{b+4+i}")
        for i in range(2): a(f"v_permlane16_swap_b32 v{b+i}, v{b+2+i}")
        for i in range(2): a(f"v_add_f32 v{b+i}, v{b+i}, v{b+2+i}")
        for i in range(2): a(f"v_add_f32_dpp v{b+i}, v{b+i}, v{b+i} row_ror:8 {DPPF}")
    ROWM = ("quad_perm:[1,0,3,2]", "quad_perm:[2,3,0,1]", "row_half_mirror", "row_mirror")
    def rowred(op, x):
        for m in ROWM: a(f"{op}_dpp v{x}, v{x}, v{x} {m} {DPPF}")
    def unpack(dst, src, msk):
        for i in range(4): a(f"v_lshlrev_b32 v{dst+2*i}, 16, v{src+i}\nv_and_b32 v{dst+2*i+1}, v{msk}, v{src+i}")
    def layernorm(src, f, dst, msk):
        unpack(f, src, msk)
        s1, s2, t1, t2 = f+8, f+9, f+10, f+11
        a(f"v_pk_mul_f32 v[{t1}:{t2}], v[{f}:{f+1}], v[{f}:{f+1}]\nv_pk_add_f32 v[{s1}:{s2}], v[{f}:{f+1}], v[{f+2}:{f+3}]")
        for i in (2, 4, 6):
            a(f"v_pk_fma_f32 v[{t1}:{t2}], v[{f+i}:{f+i+1}], v[{f+i}:{f+i+1}], v[{t1}:{t2}]")
            if i > 2: a(f"v_pk_add_f32 v[{s1}:{s2}], v[{s1}:{s2}], v[{f+i}:{f+i+1}]")
        a(f"v_add_f32 v{s1}, v{s1}, v{s2}\nv_add_f32 v{s2}, v{t1}, v{t2}")
        a(f"v_permlane32_swap_b32 v{s1}, v{s2}\nv_add_f32 v{s1}, v{s1}, v{s2}")
        rowred("v_add_f32", s1)
        a(f"v_mov_b32 v{s2}, v{s1}\nv_permlane16_swap_b32 v{s2}, v{s1}\nv_add_f32 v{s1}, v{s1}, v{s2}")
        a(f"v_mul_f32 v{s1}, 0x3b000000, v{s1}\nv_mov_b32 v{s2}, v{s1}\nv_permlane32_swap_b32 v{s1}, v{s2}")
        a(f"v_fma_f32 v{s2}, -v{s1}, v{s1}, v{s2}\nv_cvt_pk_bf16_f32 v{s1}, 0, v{s1}")
        a(f"v_max_f32 v{s2}, 0, v{s2}\nv_cvt_pk_bf16_f32 v{s2}, 0, v{s2}")
        a(f"v_add_f32 v{s2}, 0x3727c5ac, v{s2}\nv_cvt_pk_bf16_f32 v{s2}, 0, v{s2}")
        a(f"v_sqrt_f32 v{s2}, v{s2}")
        for i in (0, 2): a(f"v_pk_add_f32 v[{f+i}:{f+i+1}], v[{f+i}:{f+i+1}], v[{s1}:{s1+1}] op_sel_hi:[1,0] neg_lo:[0,1] neg_hi:[0,1]")
        a(f"v_cvt_pk_bf16_f32 v{s2}, 0, v{s2}\nv_rcp_f32 v{t1}, v{s2}")
        for i in (4, 6): a(f"v_pk_add_f32 v[{f+i}:{f+i+1}], v[{f+i}:{f+i+1}], v[{s1}:{s1+1}] op_sel_hi:[1,0] neg_lo:[0,1] neg_hi:[0,1]")
        for i in range(8): a(f"v_cvt_pk_bf16_f32 v{f+i}, 0, v{f+i}")
        for i in (0, 2, 4, 6): a(f"v_pk_mul_f32 v[{f+i}:{f+i+1}], v[{f+i}:{f+i+1}], v[{t1}:{t1+1}] op_sel_hi:[1,0]")
        for i in range(4): a(f"v_cvt_pk_bf16_f32 v{dst+i}, v{f+2*i}, v{f+2*i+1}")
    IDX = 150
    def smf(d, act, w): return f"v_smfmac_f32_16x16x64_bf16 v[{d}:{d+3}], v[{act}:{act+3}], v[{w}:{w+7}], v{IDX}"
    dp = lambda d, x, y, rows: f"v_add_f32_dpp v{d}, v{x}, v{y} quad_perm:[0,1,2,3] row_mask:{hex(rows)} bank_mask:0xf"
    def trsetup():
        a("v_and_b32 v14, 8, v0\nv_lshlrev_b32 v15, 3, v14\nv_lshl_add_u32 v14, v14, 9, v15")
        a("v_lshl_add_u32 v14, v11, 9, v14\nv_and_b32 v15, 1, v11\nv_lshl_add_u32 v14, v15, 5, v14")
        a("v_and_b32 v15, 4, v0\nv_lshl_add_u32 v14, v15, 5, v14\nv_and_b32 v15, 3, v0\nv_lshl_add_u32 v14, v15, 3, v14")
        a(f"v_and_b32 v15, 1, v0\nv_mul_u32_u24 v15, 0xaaaa, v15\nv_add_u32 v{IDX}, 0x4444, v15")
    def trread(n, dst, addr, base=0):
        for m in range(n):
            for q in range(4): a(f"ds_read_b64_tr_b16 v[{dst+8*m+2*q}:{dst+8*m+2*q+1}], v{addr} offset:{base + m*8192 + (q>>1)*2048 + (q&1)*256}")
    def poll(loads, chk, last=None, each=None, mid=None):
        L, D = lab("poll"), lab("done")
        n = len(loads)
        m = lambda i: f"s[{80+2*i}:{81+2*i}]"
        ld = lambda dst, voff, soff: f"buffer_load_dwordx4 v[{dst}:{dst+3}], v{voff}, s[8:11], {soff} offen sc1"
        for i, g_ in enumerate(loads):
            if last and i == n-1: a(f"s_mov_b64 exec, {last}")
            a(ld(*g_))
        if last: a("s_mov_b64 exec, -1")
        a(f"s_movk_i32 s58, {POLL_MAX}")
        if mid: mid()
        a(f"s_branch {L}w\n{L}:")
        if each: a(each)
        for i, g_ in enumerate(loads):
            sk = lab("sk")
            a(f"s_mov_b64 exec, {m(i) if n > 1 else 'vcc'}")
            if n > 1: a(f"s_cbranch_execz {sk}")
            a(ld(*g_) + f"\n{sk}:")
        a(f"s_mov_b64 exec, -1\ns_sub_u32 s58, s58, 1\ns_cbranch_scc1 {D}t\n{L}w:\ns_waitcnt vmcnt(0)")
        stubs.append(f"{D}t:\ns_waitcnt vmcnt(0)\ns_branch {D}")
        if n == 1: a(chk(loads[0][0], "vcc") + f"\ns_cbranch_vccnz {L}")
        else:
            for i, g_ in enumerate(loads): a(chk(g_[0], m(i)))
            a(f"s_or_b64 s[56:57], {m(0)}, {m(1)}")
            for i in range(2, n): a(f"s_or_b64 s[56:57], s[56:57], {m(i)}")
            a(f"s_cbranch_scc1 {L}")
        a(f"{D}:")
    chk_tag = lambda d, o: f"v_cmp_ne_u32 {o}, s7, v{d+3}"
    chk_tag2 = (lambda d, o: f"v_cmp_ne_u64 {o}, s[6:7], v[{d+2}:{d+3}]") if t64 else chk_tag
    chk_sen = lambda d, o: f"v_cmp_eq_u32 {o}, -1, v{d+3}"
    TAG = "s_mul_i32 s7, s6, 0x9E3779B1\ns_add_u32 s7, s7, 0x7F4A7C15\ns_bitset0_b32 s7, 31\ns_mul_i32 s6, s6, 0x85EBCA6B\ns_add_u32 s6, s6, 0x165667B1"
    settag = lambda r: f"v_mov_b32 v{r}, s6\nv_mov_b32 v{r+1}, s7"
    WF = 112
    def osetup():
        a(f"s_lshr_b32 s46, s3, 2\ns_lshl_b32 s44, s4, 16\ns_lshl_b32 s45, s46, 15\ns_add_u32 s44, s44, s45\ns_lshr_b32 s45, s5, 3\ns_lshl_b32 s45, s45, 9\ns_add_u32 s44, s44, s45\ns_lshl_b32 s45, s18, 7\ns_add_u32 s44, s44, s45\ns_add_u32 s44, s44, {WS_H2A}\ns_add_u32 s45, s44, 16384")
        a("v_and_b32 v152, 0x70, v2\nv_lshl_add_u32 v152, v8, 11, v152")
        a(f"s_lshl_b32 s47, s46, 9\ns_lshl_b32 s48, s18, 6\ns_add_u32 s47, s47, s48\ns_add_u32 s47, s47, {SB}")
        a("v_and_b32 v153, 32, v0\nv_and_b32 v154, 3, v0\nv_lshl_add_u32 v153, v154, 3, v153\nv_and_b32 v154, 1, v11\nv_lshl_add_u32 v153, v154, 2, v153\nv_and_b32 v154, 4, v0\nv_lshl_add_u32 v153, v154, 6, v153\nv_add_u32 v153, s47, v153")
        a(f"s_lshl_b32 s47, s46, 6\ns_add_u32 s47, s47, {SB+WB}\nv_lshlrev_b32 v154, 5, v154\nv_lshl_add_u32 v154, v8, 2, v154\nv_add_u32 v154, s47, v154")
        a("s_mov_b32 s48, -1\ns_min_u32 s49, s46, s4\ns_sub_u32 s49, s49, 1\nv_mov_b32 v155, 0xffff0000")
        zero(156, 4)
        if pipe: a("v_mov_b64 v[160:161], -1\nv_mov_b64 v[162:163], -1\ns_mov_b64 exec, s[48:49]\nv_mov_b64 v[156:157], -1\nv_mov_b64 v[158:159], -1\ns_mov_b64 exec, -1")
    def locflag(r):
        a(f"v_or3_b32 v{r}, v{r}, v{r+1}, v{r+2}\nv_or_b32 v{r}, v{r}, v{r+3}\nv_readfirstlane_b32 s59, v{r}")
    def h5base(sreg, st):
        a(f"s_lshl_b32 s{sreg}, s29, 11\ns_and_b32 s{st}, s{sreg}, 0xe000\ns_add_u32 s{sreg}, s{sreg}, s{st}\ns_add_u32 s{sreg}, s{sreg}, {WS_H5}")
    def leave(nbar):
        return f"s_branch L_fin{nbar}" if stamps else "s_endpgm"
    LV_ = lambda nbar: f"L_fin{nbar}" if stamps else "L_end"

    a("; ---- prologue ----")
    if stamps:
        for i in range(1, 12): a(f"s_mov_b32 s{streg(i)}, 0")
    if dly0: a("s_and_b32 s4, s2, 7\ns_cbranch_scc1 L_nd0\n" + "s_nop 15\n" * dly0 + "L_nd0:")
    stamp(0)
    a("s_load_dwordx8 s[32:39], s[0:1], 0")
    a("s_cmp_lt_u32 s2, 240\ns_cbranch_scc1 L_npf\nv_cmp_gt_u32 vcc, 90, v0\ns_and_b64 exec, exec, vcc\ns_cbranch_execz L_npf2")
    a("s_getpc_b64 s[16:17]\nv_lshlrev_b32 v3, 7, v0\nglobal_load_dword v20, v3, s[16:17] offset:512\nL_npf2:\ns_mov_b64 exec, -1\nL_npf:")
    a("v_lshrrev_b32 v1, 6, v0\nv_and_b32 v0, 63, v0\ns_cmp_ge_u32 s2, 256\nv_readfirstlane_b32 s3, v1\ns_cbranch_scc1 L_end")
    a("s_lshr_b32 s5, s2, 3\ns_and_b32 s4, s2, 7\ns_cselect_b32 s100, s5, 0\ns_and_b32 s18, s3, 3\ns_mov_b32 s10, 0x400000\ns_mov_b32 s11, 0x20000")
    a("v_lshlrev_b32 v2, 4, v0\nv_and_b32 v10, 15, v0\nv_lshrrev_b32 v11, 4, v0")
    a("v_lshrrev_b32 v8, 3, v0\nv_and_b32 v9, 32, v0\nv_and_b32 v3, 0x70, v2\nv_xor_b32 v9, v9, v3")
    a(f"s_and_b32 s29, s5, 3\ns_mov_b32 s14, {512*4096*2}\ns_mov_b32 s15, 0x20000\ns_cmp_lt_u32 s3, 4\ns_cbranch_scc0 L_lw")
    a("s_load_dwordx2 s[8:9], s[0:1], 96")
    a("s_mul_i32 s25, s5, 37\ns_lshr_b32 s25, s25, 8\ns_mul_i32 s24, s25, 7\ns_sub_u32 s24, s5, s24\ns_cmp_ge_u32 s24, 3\ns_addc_u32 s24, s24, 0")
    a("s_cmp_ge_u32 s5, 28\ns_cselect_b32 s25, s29, s25\ns_cselect_b32 s24, 3, s24")
    a("v_lshlrev_b32 v12, 6, v10\nv_lshl_add_u32 v12, v11, 4, v12\ns_lshl_b32 s28, s25, 8\nv_xor_b32 v13, s28, v12")
    a("s_and_b32 s20, s3, 1\ns_lshl_b32 s21, s20, 6\nv_lshl_add_u32 v14, v8, 13, v9\nv_xor_b32 v14, s21, v14")
    a("s_lshl_b32 s26, s25, 20\ns_lshl_b32 s27, s3, 18\ns_add_u32 s26, s26, s27\ns_lshl_b32 s27, s4, 10\ns_add_u32 s26, s26, s27\ns_lshl_b32 s27, s24, 7\ns_add_u32 s26, s26, s27\ns_lshl_b32 m0, s3, 12")
    a(f"s_lshl_b32 s20, s4, 14\ns_lshl_b32 s21, s25, 12\ns_add_u32 s20, s20, s21\ns_lshl_b32 s21, s24, 9\ns_add_u32 s20, s20, s21\ns_lshl_b32 s21, s3, 7\ns_add_u32 s20, s20, s21\ns_add_u32 s21, s20, {WS_H1B}\ns_add_u32 s20, s20, {WS_H1}")
    a("v_mov_b64 v[4:5], -1\nv_mov_b64 v[6:7], -1\nv_lshlrev_b32 v3, 7, v0")
    a("s_cmp_lg_u32 s3, 0\ns_waitcnt lgkmcnt(0)\ns_cbranch_scc1 L_nx\nglobal_load_dwordx4 v[16:19], v13, s[32:33]\nL_nx:\ns_mov_b32 s12, s38\ns_mov_b32 s13, s39")
    stamp(8)
    if amp: stamp(6)
    for i in range(4):
        a(f"buffer_load_dwordx4 v14, s[12:15], s26 offen offset:{i*1024} {nt} lds")
        if i < 3: a(f"s_add_u32 s26, s26, {65536-1024}")
    a(f"s_lshl_b32 s22, s4, 5\ns_add_u32 s22, s22, s5\ns_lshl_b32 s23, s22, 11\ns_add_u32 s23, s23, {WS_H2A}\ns_lshl_b32 s22, s22, 7\ns_add_u32 s22, s22, {WS_FL}\ns_sub_u32 s26, s20, 256")
    a(f"s_cmp_eq_u32 s3, 2\ns_cselect_b32 s26, s26, s22\ns_cselect_b32 s16, 15, 1\ns_cmp_eq_u32 s3, 1\ns_cselect_b32 s26, s23, s26\ns_cselect_b32 s16, 0x1ff, s16\ns_cselect_b32 s23, s23, {OOB}\ns_mov_b32 s17, 0")
    a("buffer_store_dwordx4 v[4:7], v2, s[8:11], s23 offen\ns_mov_b64 exec, s[16:17]\nbuffer_load_dword v159, v3, s[8:11], s26 offen sc1")
    a("s_mov_b64 exec, -1\ns_barrier\ns_branch L_cw")

    a("L_lw:\ns_cmp_eq_u32 s3, 8\ns_cbranch_scc0 L_lw2\ns_cmp_ge_u32 s100, 28\ns_cselect_b32 s12, 0, s5\ns_cmp_ge_u32 s12, 16\ns_cbranch_scc1 L_end\ns_barrier\ns_branch L_w8")
    a("L_lw2:\ns_cmp_ge_u32 s100, 28\ns_cbranch_scc1 L_lf")
    a("s_mul_i32 s16, s5, 5\ns_sub_u32 s16, s16, 12\ns_mov_b32 s19, 1\ns_mul_i32 s17, s5, 6\ns_sub_u32 s17, s17, 32\ns_cmp_lt_u32 s5, 20\ns_cselect_b32 s16, s17, s16\ns_cselect_b32 s19, 2, s19")
    a("s_lshl_b32 s17, s5, 2\ns_cmp_lt_u32 s100, 16\ns_cselect_b32 s16, s17, s16\ns_cselect_b32 s19, 0, s19")
    a(f"s_lshl_b32 s17, s4, 24\ns_lshl_b32 s27, s18, 15\ns_add_u32 s17, s17, s27\ns_add_u32 s17, s17, {KV0}\ns_lshl_b32 s27, s18, 11\ns_mov_b32 s30, {8*65536*256}\ns_mov_b32 s31, 0x20000")
    UO = [52, 53, 54, 55, 56, 57]
    def uoff(k):
        r = UO[k]
        a(f"s_lshr_b32 s21, s16, 4\ns_lshl_b32 s{r}, s21, 17\ns_xor_b32 s21, s21, s16\ns_and_b32 s21, s21, 3\ns_lshl_b32 s21, s21, 13\ns_add_u32 s{r}, s{r}, s21\ns_and_b32 s21, s16, 12\ns_lshl_b32 s21, s21, 9\ns_add_u32 s{r}, s{r}, s21\ns_add_u32 s{r}, s{r}, s17\ns_add_u32 s16, s16, 1")
    NP = (k0 + 1) // 2
    for k in range(NP): uoff(k)
    a("s_and_b32 s20, s18, 1\ns_lshl_b32 s20, s20, 7\nv_xor_b32 v6, s20, v2\nv_lshlrev_b32 v4, 4, v11\nv_xor_b32 v4, v4, v6\nv_xor_b32 v5, 64, v4\nv_lshlrev_b32 v7, 5, v11\nv_xor_b32 v6, v7, v6")
    VF, PF = 64, 16
    def lsetup():
        a("; addresses of the later phases, while the q partial is being made")
        a("s_load_dwordx2 s[8:9], s[0:1], 96\ns_load_dwordx2 s[40:41], s[0:1], 32\ns_load_dwordx2 s[42:43], s[0:1], 64\ns_load_dwordx2 s[32:33], s[0:1], 48")
        a("v_lshrrev_b32 v112, 2, v10\nv_and_b32 v113, 1, v11\nv_lshl_add_u32 v113, v113, 2, v112\ns_lshl_b32 s12, s18, 1\nv_xor_b32 v113, s12, v113\nv_lshlrev_b32 v113, 5, v113")
        a(f"v_lshl_add_u32 v112, v11, 3, v112\nv_lshl_add_u32 v112, v112, 8, v113\nv_and_b32 v13, 3, v0\nv_lshl_add_u32 v112, v13, 3, v112\nv_add_u32 v112, {LV}, v112\nv_xor_b32 v113, 32, v112")
        a(f"v_mul_u32_u24 v114, {PP}, v13\nv_lshl_add_u32 v114, v11, 4, v114\nv_add_u32 v114, {SB+2048}, v114")
        a("v_and_b32 v3, 1, v0\nv_lshlrev_b32 v3, 6, v3\nv_lshl_add_u32 v3, v11, 4, v3\nv_and_b32 v12, 2, v0\nv_lshl_add_u32 v3, v12, 8, v3")
        a(f"s_lshl_b32 s24, s4, 16\ns_lshl_b32 s25, s5, 11\ns_add_u32 s24, s24, s25\ns_lshl_b32 s25, s18, 7\ns_add_u32 s24, s24, s25\ns_add_u32 s25, s24, {WS_H2B}\ns_add_u32 s24, s24, {WS_H2A}")
        a("s_mov_b32 s50, 0x000f000f\ns_mov_b32 s51, 0x000f000f\ns_waitcnt lgkmcnt(0)\ns_load_dword s6, s[8:9], 0")
        zero(40, 12)
        for i in range(4): a(f"v_mov_b32 v{52+i}, 0x3f803f80")
        a(f"v_mov_b32 v116, {SB+1152}\nv_lshlrev_b32 v115, 4, v13\nv_add_u32 v115, {SB+1024}, v115\ns_mul_i32 s12, s18, 0x70\ns_sub_u32 s26, s25, s12")
        a(f"s_lshl_b32 s22, s18, 2\ns_add_u32 s22, s22, {SB+1152}\nv_mov_b32 v1, s22")
        osetup()
        a("s_sub_u32 s12, s5, 16\ns_mul_i32 s13, s12, 43\ns_lshr_b32 s13, s13, 7\ns_mul_i32 s22, s13, 3\ns_sub_u32 s34, s12, s22\ns_add_u32 s12, s34, 1")
        a("s_lshl_b32 s22, s4, 2\ns_add_u32 s13, s13, s22\ns_sub_u32 s13, s13, 4\ns_bfe_u32 s22, s13, 0x20001\ns_xor_b32 s12, s12, s22\ns_lshl_b32 s12, s12, 13\ns_cmp_lg_u32 s4, 0\ns_cselect_b32 s38, -1, 0\ns_mov_b32 s39, 0\ns_lshl_b32 s23, s13, 7\ns_lshl_b32 s13, s13, 16\ns_add_u32 s12, s12, s13")
        a("s_lshr_b32 s13, s18, 1\ns_lshl_b32 s13, s13, 15\ns_add_u32 s12, s12, s13\ns_and_b32 s13, s18, 1\ns_lshl_b32 s13, s13, 12\ns_add_u32 s12, s12, s13\nv_lshl_add_u32 v117, v0, 7, s12")
        a(f"v_xor_b32 v119, 0x6000, v117\ns_lshl_b32 s12, s34, 2\ns_add_u32 s12, s12, s18\ns_mul_i32 s12, s12, {32*3584}\ns_add_u32 s12, s12, s23\ns_add_u32 s12, s12, {256*3584}\nv_mul_u32_u24 v120, 3584, v0\nv_add_u32 v120, s12, v120")
        a("s_waitcnt lgkmcnt(0)\n" + TAG + "\n" + settag(146))
    a("s_waitcnt lgkmcnt(0)\ns_mov_b32 s28, s34\ns_mov_b32 s29, s35")
    stamp(1)
    def unit(k, lds, regs, first, hook=None):
        a(f"s_add_u32 m0, s27, {lds + k*8192}")
        for j in range(2):
            n = first + j
            if n == 0: a("s_barrier")
            if n == k0:
                for kk in range(NP, 6): uoff(kk)
                lsetup()
                a("s_barrier"); stamp(3)
                a("s_barrier")
            if n >= max(k0, win): a(f"s_waitcnt vmcnt({win-1})")
            if hook: hook(n)
            a(f"buffer_load_dwordx4 v{regs[j]}, s[28:31], s{UO[k]} offen offset:{j*1024} {nt} lds")
    def kflag(cls=None):
        if cls is not None:
            sk = lab("kf"); a(f"s_cmp_lg_u32 s19, {cls}\ns_cbranch_scc1 {sk}")
        a("s_mov_b64 exec, 1\nds_write_b32 v1, v1\ns_mov_b64 exec, -1"); stamp(6)
        if cls is not None: a(f"{sk}:")
    assert 5 <= win <= 7 and k0 < 8
    for k in range(4): unit(k, LK, (4, 5), 2*k)
    a("s_cmp_lt_u32 s5, 16\ns_cbranch_scc0 L_xk")
    a("s_lshl_b32 s22, s4, 1\ns_lshr_b32 s23, s5, 3\ns_add_u32 s22, s22, s23\ns_and_b32 s21, s22, 3\ns_lshl_b32 s23, s18, 2\ns_add_u32 s21, s21, s23\ns_lshl_b32 s22, s22, 18\ns_lshl_b32 s23, s21, 13\ns_add_u32 s22, s22, s23\ns_and_b32 s23, s5, 7\ns_lshl_b32 s23, s23, 7\ns_add_u32 s22, s22, s23")
    a(f"s_lshl_b32 s23, s21, 10\ns_add_u32 s23, s23, {LO}\ns_mov_b32 s12, s40\ns_mov_b32 s13, s41\ns_lshr_b32 s20, s20, 1\nv_lshl_add_u32 v12, v8, 10, v9\nv_xor_b32 v12, s20, v12")
    if "w" in exp:
        a("s_lshl_b32 s22, s4, 2\ns_lshr_b32 s21, s5, 2\ns_add_u32 s22, s22, s21\ns_lshl_b32 s22, s22, 17\ns_lshl_b32 s21, s21, 13\ns_add_u32 s22, s22, s21\ns_lshl_b32 s21, s18, 15\ns_add_u32 s22, s22, s21\ns_and_b32 s21, s5, 3\ns_lshl_b32 s21, s21, 8\ns_add_u32 s22, s22, s21\nv_lshlrev_b32 v12, 4, v10\nv_lshl_add_u32 v12, v11, 10, v12")
    if "l" in exp:
        a("s_lshl_b32 s22, s4, 2\ns_lshr_b32 s21, s5, 2\ns_add_u32 s22, s22, s21\ns_lshl_b32 s22, s22, 17\ns_lshl_b32 s21, s21, 13\ns_add_u32 s22, s22, s21\ns_lshl_b32 s21, s18, 15\ns_add_u32 s22, s22, s21\ns_and_b32 s21, s5, 3\ns_lshl_b32 s21, s21, 10\ns_add_u32 s22, s22, s21\nv_mov_b32 v12, v2")
    for i in range(8):
        if i == 4: a("s_add_u32 s23, s23, 16384")
        a(f"s_xor_b32 m0, s23, {(i&3)<<10}\ns_xor_b32 s21, s22, {(i<<12) if exp else ((i&3)<<13) + ((i>>2)<<17)}\ns_waitcnt vmcnt({win-1})")
        if i == win - 1: kflag()
        a(f"buffer_load_dwordx4 v12, s[12:15], s21 offen {nt} lds")
    a("L_xw:\ns_mov_b32 s28, s36\ns_mov_b32 s29, s37\ns_branch L_vm")
    a("L_xk:\ns_cmp_eq_u32 s19, 0\ns_cbranch_scc1 L_xw")
    unit(4, LK, (4, 5), 99)
    a("s_cmp_eq_u32 s19, 1\ns_cbranch_scc1 L_xv")
    unit(5, LK, (4, 5), 99)
    a("s_mov_b32 s28, s36\ns_mov_b32 s29, s37")
    unit(5, LV, (6, 6), 99)
    a("L_xv:\ns_mov_b32 s28, s36\ns_mov_b32 s29, s37")
    unit(4, LV, (6, 6), 99)
    a("L_vm:")
    def hookK(n):
        if n == 100 + win - 5: kflag(2)
        if n == 100 + win - 3: kflag(1)
        if n == 100 + win - 1: kflag(0)
    for k in range(4): unit(k, LV, (6, 6), 100 + 2*k, hookK)
    stamp(2)
    def vread(t):
        for tl in range(2):
            for h in range(2):
                d = VF + 8*t + 4*tl + 2*h
                a(f"ds_read_b64_tr_b16 v[{d}:{d+1}], v{112+tl} offset:{t*8192 + h*1024}")
    def vmfma(t, cnt=None):
        for tl in range(2):
            if cnt is not None: a(lg(cnt.pop(0)))
            d = 40 + 4*tl
            a(f"v_mfma_f32_16x16x32_bf16 v[{d}:{d+3}], v[{VF+8*t+4*tl}:{VF+8*t+4*tl+3}], v[{PF+4*t}:{PF+4*t+3}], v[{d}:{d+3}]")
    def lsum(t): a(f"v_mfma_f32_16x16x32_bf16 v[48:51], v[52:55], v[{PF+4*t}:{PF+4*t+3}], v[48:51]")
    a("s_waitcnt vmcnt(6)\ns_barrier")
    stamp(4)
    for t in range(4): a(f"ds_read_b128 v[{PF+4*t}:{PF+4*t+3}], v114 offset:{t*64}")
    a("ds_read_b128 v[56:59], v115\nds_read_b128 v[60:63], v116 offset:48")
    vread(0)
    a("s_cmp_eq_u32 s19, 0\ns_cbranch_scc1 L_nox")
    a(f"ds_read_b128 v[{PF+16}:{PF+19}], v114 offset:256")
    vread(4)
    a("s_cmp_eq_u32 s19, 1\ns_cbranch_scc1 L_x1")
    a(f"ds_read_b128 v[{PF+20}:{PF+23}], v114 offset:320")
    vread(5)
    a("s_waitcnt lgkmcnt(0)"); vmfma(5); lsum(5)
    a("L_x1:\ns_waitcnt lgkmcnt(0)"); vmfma(4); lsum(4)
    a("L_nox:\ns_waitcnt lgkmcnt(0)")
    locflag(60)
    vmfma(0)
    def stages(x):
        a(f"s_waitcnt vmcnt({4+x})\ns_barrier")
        vread(1)
        a(f"s_waitcnt vmcnt({2+x})\ns_barrier")
        vread(2)
        a(lg(4)); vmfma(1)
        a(f"s_waitcnt vmcnt({x})")
    a("s_cmp_lg_u32 s3, 4\ns_cbranch_scc1 L_noml")
    for t in range(4): lsum(t)
    a("v_max_f32 v56, v56, v57\nv_max3_f32 v144, v56, v58, v59\nv_mov_b32 v145, v48\ns_mov_b64 exec, 15\ns_cmp_eq_u32 s59, 1\ns_cbranch_scc0 L_mlb")
    a("buffer_store_dwordx4 v[144:147], v2, s[8:11], s24 offen offset:1024\ns_branch L_mlc")
    a("L_mlb:\nbuffer_store_dwordx4 v[144:147], v2, s[8:11], s25 offen offset:1024 sc1")
    a("L_mlc:\ns_mov_b64 exec, -1")
    stages(1)
    a("s_branch L_mld\nL_noml:")
    stages(0)
    a("L_mld:\ns_barrier")
    stamp(5)
    vread(3)
    a(lg(4)); vmfma(2)
    vmfma(3, [2, 0])
    a("s_mov_b64 exec, s[50:51]\ns_cmp_eq_u32 s59, 1")
    for i in range(4): a(f"v_cvt_pk_bf16_f32 v{12+i}, v{40+2*i}, v{41+2*i}")
    a("s_cbranch_scc0 L_pubb")
    a("buffer_store_dwordx4 v[12:15], v3, s[8:11], s24 offen")
    stamp(7)
    a("s_mov_b64 exec, -1\ns_cmp_lt_u32 s5, 16\ns_cbranch_scc1 L_ofast")
    a(f"s_mov_b64 exec, s[38:39]\ns_cbranch_execz {LV_(0)}")
    a("s_cmp_lg_u32 s34, 2\ns_cbranch_scc1 L_hz1\nglobal_load_dword v121, v119, s[42:43]\ns_branch L_hz2\nL_hz1:\nglobal_load_dword v121, v120, s[32:33]\nL_hz2:")
    a("global_load_dword v118, v117, s[42:43]\n" + leave(0))
    a("L_pubb:\nbuffer_store_dwordx4 v[12:15], v3, s[8:11], s25 offen sc1")
    a("s_mov_b64 exec, 1\ns_waitcnt vmcnt(0)\nbuffer_store_dwordx4 v[144:147], v2, s[8:11], s26 offen offset:1088 sc1\ns_mov_b64 exec, -1")
    a("s_cmp_lt_u32 s5, 16\ns_cbranch_scc1 L_oslow\n" + leave(0))

    a("; ---- wave 8 ----")
    a("L_w8:\ns_load_dwordx2 s[8:9], s[0:1], 96\ns_waitcnt lgkmcnt(0)\ns_load_dword s6, s[8:9], 0\ns_cmp_lt_u32 s5, 16\ns_cbranch_scc1 L_w8o")
    a(f"s_lshl_b32 s20, s29, 14\ns_and_b32 s21, s4, 3\ns_lshl_b32 s21, s21, 16\ns_add_u32 s20, s20, s21\ns_add_u32 s20, s20, {WS_H3}\ns_lshl_b32 s101, s4, 2\ns_add_u32 s29, s29, s101\ns_sub_u32 s29, s29, 4")
    h5base(21, 13)
    a("s_add_u32 s22, s21, 8192\nv_lshlrev_b32 v13, 7, v10\nv_and_b32 v14, 1, v11\nv_lshl_add_u32 v13, v14, 13, v13\nv_lshlrev_b32 v14, 7, v0\ns_waitcnt lgkmcnt(0)")
    a("s_barrier\ns_barrier\nbuffer_load_dword v16, v13, s[8:11], s21 offen sc1")
    a(TAG + f"\ns_getreg_b32 s6, hwreg(HW_REG_XCC_ID, 0, 4)\ns_lshl_b32 s24, s4, 14\ns_add_u32 s24, s24, {WS_H1}\nv_lshlrev_b32 v4, 9, v0\ns_mov_b32 exec_hi, 0")
    a("s_waitcnt vmcnt(0)\nbuffer_load_dwordx2 v[6:7], v4, s[8:11], s24 offen offset:8 sc1")
    a("s_mov_b32 s16, -1\ns_mov_b32 s17, -1\ns_mov_b32 s19, 1\nL_lat:")
    for r, acc in ((21, 16), (22, 17)):
        a(f"s_memtime s[12:13]\ns_waitcnt lgkmcnt(0)\ns_load_dword s23, s[8:9], s{r} glc\ns_waitcnt lgkmcnt(0)\ns_memtime s[14:15]\ns_add_u32 s{r}, s{r}, 512\ns_waitcnt lgkmcnt(0)\ns_sub_u32 s12, s14, s12\ns_min_u32 s{acc}, s{acc}, s12")
    a("s_sub_u32 s19, s19, 1\ns_cbranch_scc0 L_lat\ns_cmp_lt_u32 s17, s16\ns_cselect_b32 s12, 0x2000, 0")
    if stamps: a(f"s_mov_b32 s{streg(1)}, s16\ns_mov_b32 s{streg(2)}, s17")
    a("s_mov_b64 exec, -1\ns_add_u32 s20, s20, s12\nbuffer_load_dword v16, v14, s[8:11], s20 offen sc1\ns_mov_b32 exec_hi, 0")
    a(f"s_mov_b32 s13, {3 if fast else -1}\ns_waitcnt vmcnt(1)")
    if fast: a("L_lz:\nv_cmp_ne_u64 vcc, s[6:7], v[6:7]\ns_cbranch_vccz L_lzd\ns_sub_u32 s13, s13, 1\ns_cbranch_scc1 L_lzd\nbuffer_load_dwordx2 v[6:7], v4, s[8:11], s24 offen offset:8 sc1\ns_waitcnt vmcnt(0)\ns_branch L_lz\nL_lzd:")
    a(f"v_mov_b32 v12, s12\nv_mov_b32 v13, s13\nv_mov_b32 v15, {SB+1152}\ns_mov_b64 exec, 1\nds_write_b64 v15, v[12:13] offset:16")
    a("s_waitcnt lgkmcnt(0)\ns_barrier\n" + leave(4))
    a("L_w8o:\ns_waitcnt lgkmcnt(0)\ns_barrier\ns_barrier\n" + TAG)
    a(f"v_and_b32 v20, 31, v0\nv_lshlrev_b32 v20, 11, v20\nv_lshrrev_b32 v21, 5, v0\nv_lshl_add_u32 v20, v21, 4, v20\nv_lshlrev_b32 v21, 2, v0\nv_add_u32 v21, {SB+WB}, v21")
    a(f"s_lshl_b32 s22, s4, 16\ns_lshr_b32 s23, s5, 3\ns_lshl_b32 s23, s23, 5\ns_add_u32 s22, s22, s23\ns_add_u32 s22, s22, {WS_H2A+1024}\ns_cmp_eq_u32 s4, 0\ns_cselect_b32 s16, -1, 0x0fffffff\ns_mov_b32 s17, s16")
    a(f"v_mov_b32 v32, 0xff800000\nv_mov_b32 v33, 0\nv_mov_b32 v1, {SB+1152}\n" + settag(34))
    a("s_barrier\nds_read_b128 v[24:27], v1 offset:48\ns_waitcnt lgkmcnt(0)")
    locflag(24)
    a(f"s_cmp_eq_u32 s59, 1\ns_cselect_b32 s23, 0, {WS_H2B-WS_H2A}\ns_add_u32 s22, s22, s23\ns_setprio 3")
    a("s_barrier\ns_barrier\ns_barrier")
    poll([(32, 20, "s22")], chk_tag2, last="s[16:17]")
    stamp(8)
    a(f"v_max_f32_dpp v27, v32, v32 {ROWM[0]} {DPPF}")
    for m in ROWM[1:]: a(f"v_max_f32_dpp v27, v27, v27 {m} {DPPF}")
    a("v_mov_b32 v26, v27\nv_permlane16_swap_b32 v26, v27\nv_max_f32 v27, v27, v26")
    a("v_sub_f32 v32, v32, v27\nv_exp_f32 v28, v32\nv_mul_f32 v30, v33, v28")
    rowred("v_add_f32", 30)
    a("v_mov_b32 v26, v30\nv_permlane16_swap_b32 v26, v30\nv_add_f32 v30, v30, v26")
    a("v_rcp_f32 v30, v30\nv_mul_f32 v28, v28, v30\nds_write_b32 v21, v28")
    stamp(9)
    a(leave(3))

    a("L_cw:\ns_setprio 2\ns_load_dword s6, s[8:9], 0\ns_load_dwordx8 s[40:47], s[0:1], 32\ns_load_dwordx4 s[48:51], s[0:1], 64\ns_load_dwordx2 s[52:53], s[0:1], 80")
    a(f"v_lshlrev_b32 v1, 2, v0\nv_cmp_gt_u32 vcc, 16, v0\nv_add_u32 v1, {SB+1024}, v1\nds_write_b32 v1, v4 offset:{WB-1024}\nv_cndmask_b32 v3, 0, -1, vcc\nds_write_b32 v1, v3")
    trsetup()
    a("s_lshl_b32 s12, s3, 5\nv_xor_b32 v15, s12, v14")
    a("v_mov_b32 v63, 0xffff0000\nv_lshlrev_b32 v144, 3, v0\nv_lshlrev_b32 v145, 7, v0")
    zero(32, 8)
    a(f"s_lshl_b32 s22, s4, 12\ns_lshl_b32 s23, s5, 2\ns_add_u32 s22, s22, s23\ns_add_u32 s22, s22, {WS_FL}")
    a(f"v_mov_b32 v1, {SB+1152}\ns_lshl_b32 s12, s3, 2\nv_add_u32 v148, s12, v1")
    def spin4(off):
        L = lab("spin")
        a(f"{L}:\nds_read_b128 v[24:27], v1 offset:{off}\ns_waitcnt lgkmcnt(0)\nv_min_u32 v28, v24, v25\nv_min3_u32 v28, v28, v26, v27\nv_cmp_eq_u32 vcc, 0, v28\ns_cbranch_vccnz {L}")
    a(f"s_getreg_b32 s15, hwreg(HW_REG_XCC_ID, 0, 4)\nv_add_u32 v3, {SB}, v2\ns_cmp_lg_u32 s3, 0\ns_cbranch_scc1 L_nln\ns_waitcnt vmcnt(6)")
    stamp(2)
    layernorm(16, 20, 16, 63)
    a("ds_write_b128 v3, v[16:19]\nL_nln:")
    a("s_waitcnt lgkmcnt(0)\n" + TAG + "\nv_mov_b32 v58, s15\nv_mov_b32 v59, s7")
    a("s_waitcnt vmcnt(2)\ns_barrier")
    stamp(1)
    a("ds_read_b128 v[16:19], v3")
    trread(2, WF, 15)
    a(lg(4) + "\n" + smf(32, 16, WF) + "\ns_waitcnt lgkmcnt(0)\n" + smf(36, 16, WF+8))
    a("v_pk_add_f32 v[56:57], v[32:33], v[38:39]\nv_add_f32 v56, v56, v57")
    a(f"v_mov_b32_dpp v57, v56 quad_perm:[1,1,3,3] {DPPF}")
    a("s_waitcnt vmcnt(0)\ns_mov_b64 exec, 0x5555\nbuffer_store_dwordx4 v[56:59], v144, s[8:11], s20 offen")
    PUBB = "s_mov_b64 exec, 0x5555\nbuffer_store_dwordx4 v[56:59], v144, s[8:11], s21 offen sc1\ns_mov_b64 exec, -1"
    a("s_cmp_lg_u32 s3, 1\ns_cbranch_scc1 L_nohint\ns_mov_b32 exec_lo, -1\nbuffer_store_dword v59, v145, s[8:11], s22 offen")
    a("L_nohint:\ns_mov_b64 exec, -1\ns_barrier")
    stamp(4)
    a("s_cmp_ge_u32 s100, 28\ns_cbranch_scc1 L_cf")
    if pf0:
        a("; group 0, s >= 16 (j = s-16): pull rows 256(j>>3) + 128 + 32w + 4(j&7) + 0..3 of its wo rows into L2, and the slow lines 128 rows below")
        a(f"s_cmp_lg_u32 s4, 0\ns_cbranch_scc1 L_nopf0\ns_sub_u32 s13, s5, 16\ns_cmp_ge_u32 s13, {16 if pf0 == 2 else 12}\ns_cbranch_scc1 L_nopf0")
        a("s_lshr_b32 s12, s13, 3\ns_lshl_b32 s12, s12, 18\ns_and_b32 s13, s13, 7\ns_lshl_b32 s13, s13, 12\ns_add_u32 s12, s12, s13\ns_lshl_b32 s13, s3, 15\ns_add_u32 s12, s12, s13")
        a("v_lshlrev_b32 v4, 7, v0\nv_add_u32 v4, 0x20000, v4\ns_mov_b32 exec_lo, 0\nv_lshlrev_b32 v4, 10, v10\nv_add_u32 v4, 0x180, v4\ns_mov_b32 exec_lo, -1\ns_mov_b32 exec_hi, 15\nv_add_u32 v4, s12, v4\nglobal_load_dword v151, v4, s[40:41]\ns_mov_b64 exec, -1\nL_nopf0:")
    a("s_sub_u32 s13, s100, " + ("40" if "n" in exp else "20") + "\ns_cbranch_scc1 L_nopfo\ns_lshl_b32 s12, s4, 19\ns_lshr_b32 s14, s13, 1\ns_lshl_b32 s14, s14, 17\ns_add_u32 s12, s12, s14\ns_and_b32 s13, s13, 1\ns_lshl_b32 s13, s13, 14\ns_add_u32 s12, s12, s13\ns_lshl_b32 s13, s3, 12\ns_add_u32 s12, s12, s13\ns_add_u32 s12, s12, 0x180")
    a("v_and_b32 v4, 3, v0\nv_lshl_add_u32 v4, v4, 15, s12\nv_and_b32 v5, 12, v0\nv_lshl_add_u32 v4, v5, 8, v4\nglobal_load_dword v151, v4, s[40:41]\nL_nopfo:")
    KF, QF, DR = 64, 16, 32
    a("s_mov_b32 s19, 2\ns_cmp_lt_u32 s5, 20\ns_cselect_b32 s19, 4, s19\ns_cmp_lt_u32 s100, 16\ns_cselect_b32 s19, 0, s19")
    a("s_cmp_lt_u32 s3, s19\ns_cselect_b32 s19, 1, 0\ns_mov_b32 s16, 0x00ff00ff\ns_cselect_b32 s16, 0x0fff0fff, s16\ns_mov_b32 s17, s16")
    a(f"s_lshl_b32 s12, s3, 12\ns_add_u32 s12, s12, {LK}\nv_xor_b32 v4, v10, v11\nv_lshlrev_b32 v4, 4, v4\nv_lshl_add_u32 v4, v10, 8, v4\nv_add_u32 v4, s12, v4\nv_xor_b32 v5, 64, v4\nv_xor_b32 v6, 0x80, v4\nv_xor_b32 v7, 0xc0, v4")
    a(f"v_and_b32 v13, 3, v0\nv_mul_u32_u24 v3, {QP}, v13\nv_lshl_add_u32 v3, v11, 4, v3\nv_add_u32 v3, {SB+QB}, v3")
    a(f"v_mul_u32_u24 v60, {PP}, v13\nv_and_b32 v61, 12, v0\nv_lshl_add_u32 v60, v61, 5, v60\nv_lshl_add_u32 v60, v11, 3, v60\ns_lshl_b32 s12, s3, 5\ns_add_u32 s12, s12, {SB+2048}\nv_add_u32 v60, s12, v60")
    a(f"v_lshlrev_b32 v61, 4, v13\nv_add_u32 v61, {SB+1024}, v61\ns_lshl_b32 s12, s3, 2\nv_add_u32 v62, s12, v61")
    a(f"v_mov_b32 v146, {SCALE}\nv_mov_b32 v147, {LOG2E}\nv_add_u32 v15, {LO}, v15")
    a(f"s_lshl_b32 s24, s4, 14\ns_lshl_b32 s25, s3, 10\ns_add_u32 s24, s24, s25\ns_add_u32 s24, s24, {WS_H1}\ns_add_u32 s25, s24, 4096\ns_add_u32 s26, s24, 8192\ns_add_u32 s27, s24, 12288")
    a(f"s_lshl_b32 s12, s4, 12\ns_add_u32 s12, s12, {WS_FL}\ns_add_u32 s12, s12, s8\ns_addc_u32 s13, s9, 0\ns_mov_b32 s22, s7\ns_mov_b32 s23, s7")
    a(f"s_mul_i32 s14, s3, {QP}\ns_add_u32 s14, s14, {SB+QB}\nv_lshl_add_u32 v149, v0, 2, s14")
    a("s_mov_b32 s58, 0\nL_hint:\ns_add_u32 s59, s58, 64\ns_load_dwordx16 s[80:95], s[12:13], s58\ns_load_dwordx16 s[32:47], s[12:13], s59\ns_add_u32 s58, s58, 128\ns_cmp_ge_u32 s58, 4096\ns_cbranch_scc1 L_hintd\ns_waitcnt lgkmcnt(0)")
    for i in list(range(80, 96, 2)) + list(range(32, 48, 2)): a(f"s_cmp_lg_u64 s[{i}:{i+1}], s[22:23]\ns_cbranch_scc1 L_hint")
    a("L_hintd:\ns_waitcnt lgkmcnt(0)")
    stamp(7)
    X = WS_H1 ^ WS_H1B
    def kreads():
        osetup(); spin4(0)
        stamp(6)
        for t in range(3):
            for j in range(4): a(f"ds_read_b128 v[{KF+16*t+4*j}:{KF+16*t+4*j+3}], v{4+j} offset:{t*16384}")
    poll([(32+4*p, 2, f"s{24+p}") for p in range(4)], chk_tag, mid=kreads,
         each=f"s_cmp_gt_u32 s58, {POLL_MAX-3}\ns_cbranch_scc1 L_qa\n" + PUBB + "\n" + "\n".join(f"s_xor_b32 s{r}, s{r}, {X}" for r in range(24, 28)) + "\nL_qa:")
    stamp(11)
    a("v_pk_add_f32 v[32:33], v[32:33], v[36:37]\nv_pk_add_f32 v[40:41], v[40:41], v[44:45]")
    a("v_min3_u32 v35, v34, v38, v42\nv_max3_u32 v34, v34, v38, v42\nv_pk_add_f32 v[32:33], v[32:33], v[40:41]\nv_min3_u32 v35, v35, v46, v58\nv_max3_u32 v34, v34, v46, v58")
    a("v_cvt_pk_bf16_f32 v32, v32, v33\nv_cmp_ne_u32 vcc, v34, v35\nds_write_b32 v149, v32")
    a("s_cmp_lg_u64 vcc, 0\ns_cselect_b32 s14, 2, " + ("1" if fast else "2") + "\nv_mov_b32 v34, s14\ns_mov_b64 exec, 1\nds_write_b32 v148, v34 offset:48\ns_mov_b64 exec, -1")
    spin4(48)
    stamp(3)
    locflag(24)
    a("s_cmp_eq_u32 s59, 1\ns_cbranch_scc1 L_qb\n" + PUBB + "\nL_qb:")
    for j in range(4): a(f"ds_read_b128 v[{QF+4*j}:{QF+4*j+3}], v3 offset:{j*64}")
    def stile(t):
        for j in range(4):
            if t == 0: a(lg(3-j))
            c = "0" if j == 0 else f"v[{DR+4*t}:{DR+4*t+3}]"
            a(f"v_mfma_f32_16x16x32_bf16 v[{DR+4*t}:{DR+4*t+3}], v[{KF+16*t+4*j}:{KF+16*t+4*j+3}], v[{QF+4*j}:{QF+4*j+3}], {c}")
    def pack(t):
        for r in range(4): a(f"v_mov_b32_dpp v{DR+r}, v{DR+4*t+r} quad_perm:[0,1,2,3] row_mask:0xf bank_mask:{hex(1<<t)}")
    stile(0); stile(1)
    a("s_cmp_eq_u32 s19, 0\ns_cbranch_scc1 L_no3")
    stile(2); pack(2)
    a("L_no3:\ns_nop 5")
    pack(1)
    S = [DR+r for r in range(4)]
    for x in S: a(f"v_cvt_pk_bf16_f32 v{x}, 0, v{x}")
    for x in S[::2]: a(f"v_pk_mul_f32 v[{x}:{x+1}], v[{x}:{x+1}], v[146:147] op_sel_hi:[1,0]")
    for x in S: a(f"v_cvt_pk_bf16_f32 v{x}, 0, v{x}")
    for x in S[::2]: a(f"v_pk_mul_f32 v[{x}:{x+1}], v[{x}:{x+1}], v[146:147] op_sel:[0,1]")
    a(f"v_max_f32 v20, v{S[0]}, v{S[1]}\nv_max3_f32 v20, v20, v{S[2]}, v{S[3]}")
    a(f"v_max_f32_dpp v20, v20, v20 row_ror:4 {DPPF}\nv_max_f32_dpp v20, v20, v20 row_ror:8 {DPPF}")
    a("v_permlane32_swap_b32 v20, v21\nv_max_f32 v20, v20, v21\nv_permlane16_swap_b32 v20, v21\nv_max_f32 v20, v20, v21")
    a("s_mov_b64 exec, 15\nds_write_b32 v62, v20\ns_mov_b64 exec, -1")
    L = lab("spin")
    a(f"s_movk_i32 s58, {POLL_MAX}\n{L}:\nds_read_b128 v[16:19], v61\ns_sub_u32 s58, s58, 1\ns_waitcnt lgkmcnt(0)\ns_cbranch_scc1 {L}d\nv_max_u32 v21, v16, v17\nv_max_f32 v20, v16, v17\nv_max3_u32 v21, v21, v18, v19\nv_max3_f32 v20, v20, v18, v19\nv_cmp_eq_u32 vcc, -1, v21\ns_cbranch_vccnz {L}\n{L}d:")
    for x in S[::2]: a(f"v_pk_add_f32 v[{x}:{x+1}], v[{x}:{x+1}], v[20:21] op_sel_hi:[1,0] neg_lo:[0,1] neg_hi:[0,1]")
    for x in S: a(f"v_exp_f32 v{x}, v{x}")
    a(f"v_cvt_pk_bf16_f32 v16, v{S[0]}, v{S[1]}\nv_cvt_pk_bf16_f32 v17, v{S[2]}, v{S[3]}\ns_mov_b64 exec, s[16:17]\nds_write_b64 v60, v[16:17]\ns_mov_b64 exec, -1\ns_waitcnt lgkmcnt(0)")
    a("s_barrier")
    stamp(5)
    a(f"s_setprio 0\ns_cmp_ge_u32 s5, 16\ns_cbranch_scc1 {LV_(3)}")
    trread(4, WF, 15)
    zero(64, 4)
    a(f"v_and_b32 v12, 1, v0\nv_lshlrev_b32 v12, 6, v12\nv_lshl_add_u32 v12, v11, 4, v12\nv_and_b32 v13, 2, v0\nv_lshl_add_u32 v12, v13, 8, v12\nv_add_u32 v12, {SB}, v12")
    a(f"s_lshl_b32 s31, s4, 12\ns_and_b32 s13, s31, 0x6000\ns_add_u32 s31, s31, s13\ns_lshl_b32 s13, s5, 8\ns_add_u32 s31, s31, s13\ns_lshl_b32 s13, s3, 16\ns_add_u32 s31, s31, s13\ns_add_u32 s31, s31, {WS_H3}")
    a(f"v_lshlrev_b32 v3, 4, v10\nv_lshl_add_u32 v3, v11, 13, v3\ns_lshl_b32 s12, s3, 5\ns_add_u32 s12, s12, {SB+1280}\nv_lshl_add_u32 v13, v10, 1, s12\nv_lshlrev_b32 v1, 3, v10\nv_add_u32 v1, {SB+1280}, v1\n" + settag(82))
    a("s_cmp_eq_u32 s59, 1\ns_barrier\ns_barrier\ns_barrier\ns_cbranch_scc0 L_oslow")

    a("L_ofast:")
    if pipe:
        a(f"s_mov_b64 s[80:81], -1\ns_mov_b64 s[82:83], s[48:49]\ns_movk_i32 s58, {POLL_MAX}\nL_h2:\ns_mov_b64 exec, s[80:81]\ns_cbranch_execz L_h2a\nbuffer_load_dwordx4 v[160:163], v152, s[8:11], s44 offen sc1\nL_h2a:\ns_mov_b64 exec, s[82:83]\ns_cbranch_execz L_h2b\nbuffer_load_dwordx4 v[156:159], v152, s[8:11], s45 offen sc1")
        a(f"L_h2b:\ns_mov_b64 exec, -1\ns_sub_u32 s58, s58, 1\ns_cbranch_scc1 L_h2d\ns_waitcnt vmcnt({pipe})")
        a("v_max3_u32 v30, v160, v161, v162\nv_max3_u32 v31, v156, v157, v158\nv_max_u32 v30, v30, v163\nv_max_u32 v31, v31, v159\nv_cmp_eq_u32 s[80:81], -1, v30\nv_cmp_eq_u32 s[82:83], -1, v31\ns_or_b64 s[56:57], s[80:81], s[82:83]\ns_cbranch_scc1 L_h2\nL_h2d:")
    else: poll([(160, 152, "s44"), (156, 152, "s45")], chk_sen, last="s[48:49]")
    stamp(9)
    L = lab("spin")
    a("ds_read2_b32 v[28:29], v154 offset0:0 offset1:8")
    unpack(32, 160, 155); unpack(48, 156, 155)
    a(f"s_waitcnt lgkmcnt(0)\nv_max_u32 v30, v28, v29\nv_cmp_eq_u32 vcc, -1, v30\ns_cbranch_vccnz {L}\n{L}d:")
    stubs.append(f"{L}:\ns_movk_i32 s58, {POLL_MAX}\n{L}l:\nds_read2_b32 v[28:29], v154 offset0:0 offset1:8\ns_sub_u32 s58, s58, 1\ns_waitcnt lgkmcnt(0)\ns_cbranch_scc1 {L}d\nv_max_u32 v30, v28, v29\nv_cmp_eq_u32 vcc, -1, v30\ns_cbranch_vccnz {L}l\ns_branch {L}d")
    for i in range(8): a(f"v_mul_f32 v{32+i}, v28, v{32+i}")
    for i in (0, 4, 1, 5, 2, 6, 3, 7): a(f"v_fmac_f32 v{32+i}, v29, v{48+i}")
    redscat8(32)
    a(f"v_cvt_pk_bf16_f32 v32, v32, v33\nds_write_b32 v153, v32\ns_cmp_ge_u32 s3, 4\ns_waitcnt lgkmcnt(0)\ns_barrier\ns_cbranch_scc1 {LV_(2)}")
    for m in range(4): a(f"ds_read_b128 v[{16+4*m}:{19+4*m}], v12 offset:{128*m}")
    for m in range(4): a(lg(3-m) + "\n" + smf(64, 16+4*m, WF+8*m))
    a("s_mov_b64 exec, 0xffff\nv_add_f32 v20, v64, v65\nv_add_f32 v21, v66, v67\nv_add_f32 v20, v20, v21")
    a("v_cvt_pk_bf16_f32 v20, v20, v20\nds_write_b16 v13, v20\ns_mov_b32 exec_lo, -1\ns_waitcnt lgkmcnt(0)\ns_barrier")
    a("ds_read_b64 v[80:81], v1\ns_waitcnt lgkmcnt(0)\nbuffer_store_dwordx4 v[80:83], v3, s[8:11], s31 offen sc1")
    stamp(10)
    if wb0: a("s_or_b32 s12, s2, s3\ns_cbranch_scc1 L_nwb\ns_waitcnt vmcnt(0)\nbuffer_wbl2 sc1\nL_nwb:")
    a(leave(1))
    for t in stubs: a(t)
    stubs.clear()
    a("L_oslow:")
    a(f"s_add_u32 s44, s44, {WS_H2B-WS_H2A}\ns_add_u32 s45, s45, {WS_H2B-WS_H2A}")
    a(f"s_lshl_b32 s12, s4, 16\ns_lshl_b32 s13, s46, 15\ns_add_u32 s12, s12, s13\ns_lshl_b32 s13, s18, 4\ns_add_u32 s12, s12, s13\ns_add_u32 s12, s12, {WS_H2B+1088}\ns_add_u32 s13, s12, 16384\nv_lshlrev_b32 v22, 11, v8\n" + settag(54))
    poll([(48, 22, "s12"), (52, 22, "s13")], chk_tag2, last="s[48:49]")
    a("s_branch L_ofast")

    def xload():
        a("v_lshlrev_b32 v20, 3, v10\nv_lshl_add_u32 v20, v11, 1, v20\ns_lshl_b32 s16, s3, 7\nv_add_u32 v20, s16, v20\nglobal_load_ushort v60, v20, s[32:33]")
    WW = 64
    DA = [128, 132, 136, 140, 152, 156, 160, 164]
    a("L_lf:\ns_lshl_b32 s101, s4, 2\ns_add_u32 s29, s29, s101\ns_sub_u32 s29, s29, 4\ns_barrier")
    a(f"s_load_dwordx2 s[12:13], s[0:1], 48\ns_load_dwordx2 s[48:49], s[0:1], 64\ns_load_dwordx2 s[8:9], s[0:1], 96\ns_load_dwordx2 s[52:53], s[0:1], 80\ns_mov_b32 s14, {512*1792*2}")
    a("v_mul_u32_u24 v4, 3584, v8\nv_add_u32 v4, v4, v9\nv_xor_b32 v5, 64, v4")
    a(f"s_mul_i32 s26, s18, {8*3584}\ns_lshl_b32 s27, s29, 7\ns_add_u32 s26, s26, s27\ns_lshl_b32 s20, s18, 10\ns_add_u32 m0, s20, {LW1}\ns_lshl_b32 s20, s18, 14")
    trsetup()
    a("s_waitcnt lgkmcnt(0)\ns_load_dword s6, s[8:9], 0")
    a(f"s_add_u32 s22, s20, {LW2}\nv_add_u32 v24, s22, v14\nv_xor_b32 v25, 32, v24\nv_xor_b32 v26, 64, v24\nv_xor_b32 v27, 0x60, v24")
    a(f"v_and_b32 v13, 1, v0\nv_lshlrev_b32 v13, 6, v13\nv_lshl_add_u32 v13, v11, 4, v13\nv_add_u32 v13, {SB+1280}, v13\nv_mov_b32 v63, 0xffff0000\nv_mov_b32 v22, 0\nv_mov_b32 v30, 0")
    h5base(31, 30)
    a("s_lshl_b32 s30, s18, 9\ns_add_u32 s31, s31, s30\nv_and_b32 v3, 0x1f0, v2\nv_and_b32 v6, 32, v0\nv_lshl_add_u32 v3, v6, 8, v3")
    a("s_waitcnt lgkmcnt(0)\ns_add_u32 s30, s6, 1\nv_mov_b32 v61, s30\n" + TAG + "\ns_barrier\ns_barrier")
    xload()
    for i in range(16):
        if fw1[i] != "-": a(f"s_waitcnt vmcnt({int(fw1[i], 16)-1})")
        a(f"buffer_load_dwordx4 v{4+(i&1)}, s[12:15], s26 offen {nt} lds\ns_add_u32 s26, s26, {32*3584}\ns_add_u32 m0, m0, 4096")
    a(f"s_mov_b32 s12, s48\ns_mov_b32 s13, s49\ns_lshl_b32 s26, s29, 16\ns_lshl_b32 s21, s18, 8\ns_add_u32 s26, s26, s21\ns_add_u32 s20, s20, {LW2}")
    a("s_bfe_u32 s21, s29, 0x20001\ns_lshl_b32 s22, s21, 13\ns_xor_b32 s26, s26, s22\ns_lshl_b32 s22, s21, 10\ns_xor_b32 s20, s20, s22")
    a("v_lshl_add_u32 v4, v8, 10, v9\nv_xor_b32 v5, 64, v4")
    for i in range(16):
        rb = (i>>2) | ((i>>1)&1)<<2
        a(f"s_xor_b32 m0, s20, {rb<<10}\ns_xor_b32 s21, s26, {(rb<<13) + (i&1)*128}")
        if i & 1: a("s_add_u32 m0, m0, 8192")
        if i < p2: a("s_waitcnt vmcnt(7)")
        if i == p2:
            a(f"s_waitcnt vmcnt({p2})"); stamp(3)
            a("s_barrier"); stamp(4)
        a(f"buffer_load_dwordx4 v{4+(rb>>2)}, s[12:15], s21 offen {nt} lds")
    a("s_branch L_h3")
    a("L_cf:\ns_setprio 0\ns_lshl_b32 s101, s4, 2\ns_add_u32 s29, s29, s101\ns_sub_u32 s29, s29, 4")
    xload()
    a("s_lshl_b32 s27, s29, 7\ns_lshl_b32 s17, s3, 5\ns_add_u32 s27, s27, s17\nv_lshl_add_u32 v21, v10, 1, s27\nglobal_load_ushort v61, v21, s[46:47]")
    a("s_cmp_eq_u32 s5, 28\ns_cselect_b32 s28, s4, 8\ns_cmp_eq_u32 s2, 239\ns_cselect_b32 s28, 0, s28\ns_and_b32 s19, s28, 7\ns_lshl_b32 s19, s19, 7\ns_lshl_b32 s26, s3, 3\ns_add_u32 s19, s19, s26")
    a("v_and_b32 v28, 3, v0\nv_lshlrev_b32 v22, 1, v28\nv_lshl_add_u32 v22, v11, 5, v22\nv_add_u32 v22, s19, v22\nglobal_load_ushort v62, v22, s[50:51]")
    a(f"v_add_u32 v15, {LW1}, v15\nv_add_u32 v12, {SB}, v12\nv_lshl_add_u32 v21, v10, 1, s17\nv_add_u32 v21, {SB+1280}, v21\nv_add_u32 v29, {SB}, v22")
    a("v_and_b32 v30, 12, v0\nv_lshlrev_b32 v30, 9, v30\nv_lshl_add_u32 v30, v11, 14, v30\nv_lshl_add_u32 v30, v28, 4, v30")
    for i in range(4): a(f"v_mov_b32 v{16+i}, 0x3f803f80")
    zero(24, 4)
    a("v_mov_b32 v31, v16\nv_mov_b32 v3, 0\nv_mov_b32 v13, 0\ns_barrier")
    a("ds_read_b32 v4, v1 offset:20\ns_waitcnt lgkmcnt(0)\nv_cmp_eq_u32 vcc, -1, v4\ns_cbranch_vccz L_cf3\n" + PUBB + "\nL_cf3:")
    trread(8, WW, 15)
    a("s_waitcnt lgkmcnt(0)")
    for m in range(8): a(smf(24, 16, WW+8*m))
    a("v_add_f32 v27, v24, v25")
    zero(24, 2)
    a("s_waitcnt vmcnt(0)\nv_lshlrev_b32 v61, 16, v61\nv_lshlrev_b32 v62, 16, v62")
    a(f"L_h3:\nv_mov_b32 v1, {SB+1152}\nds_read_b32 v1, v1 offset:16")
    for d in DA: zero(d, 4)
    a(f"v_lshlrev_b32 v58, 16, v60\nv_add_u32 v20, {SB}, v20\nv_mov_b32 v56, 0x3f80\nv_mov_b32 v57, 1.0\n" + settag(38))
    a(f"v_lshlrev_b32 v23, 4, v10\nv_lshl_add_u32 v23, v11, 11, v23\ns_and_b32 s22, s4, 3\ns_lshl_b32 s22, s22, 16\ns_lshl_b32 s23, s3, 8\ns_add_u32 s22, s22, s23\ns_add_u32 s22, s22, {WS_H3}\ns_add_u32 s23, s22, 16384\ns_add_u32 s24, s22, 32768\ns_add_u32 s25, s22, 49152")
    a("s_waitcnt lgkmcnt(0)\nv_add_u32 v23, v23, v1\nv_add_u32 v30, v30, v1")
    a(f"s_waitcnt vmcnt({xw})\ns_barrier")
    stamp(5)
    def w2frags():
        a("s_cmp_lt_u32 s3, 4\ns_cbranch_scc1 L_nw2\ns_waitcnt vmcnt(4)")
        for j in range(8): trread(1, WW + 8*j, 24 + (j&3), (j>>2)*8192)
        a("L_nw2:")
    poll([(40+4*i, 23, f"s{22+i}") for i in range(4)], chk_tag2, mid=w2frags)
    stamp(7)
    def sum4(dst, srcs):
        a(f"v_lshlrev_b32 v{dst}, 16, v{srcs[0]}\nv_lshlrev_b32 v{dst+2}, 16, v{srcs[0]+1}\nv_and_b32 v{dst+1}, v63, v{srcs[0]}\nv_and_b32 v{dst+3}, v63, v{srcs[0]+1}")
        for r in srcs[1:]:
            for i in (0, 2, 1, 3): a(f"v_dot2c_f32_bf16 v{dst+i}, v{r+(i>>1)}, v{56+(i&1)}")
        redscat4(dst)
    sum4(32, (40, 44, 48, 52))
    a("v_cvt_pk_bf16_f32 v32, 0, v32\nv_add_f32 v32, v32, v58\nv_cvt_pk_bf16_f32 v32, v32, v32")
    a("ds_write_b16 v20, v32\ns_cmp_ge_u32 s3, 4\ns_waitcnt lgkmcnt(0)\ns_barrier\ns_cbranch_scc1 L_f2")
    a("ds_read_b128 v[16:19], v12\nds_read_u16 v60, v29\n" + lg(1))
    for i in range(4): a(f"v_dot2c_f32_bf16 v24, v{16+i}, v31\nv_dot2c_f32_bf16 v25, v{16+i}, v{16+i}")
    sm = lambda m: smf(DA[m], 16, WW+8*m)
    a(sm(0) + "\n" + sm(2) + "\n" + sm(4))
    a("v_permlane32_swap_b32 v24, v25\nv_add_f32 v24, v24, v25")
    a(sm(6) + "\n" + sm(1))
    a(f"v_add_f32_dpp v24, v24, v24 {ROWM[0]} {DPPF}")
    a(sm(3))
    a(f"v_add_f32 v32, v128, v129\nv_add_f32_dpp v24, v24, v24 {ROWM[1]} {DPPF}")
    a(sm(5))
    a(dp(32, 136, 137, 2) + f"\nv_add_f32_dpp v24, v24, v24 {ROWM[2]} {DPPF}")
    a(sm(7))
    a(dp(32, 152, 153, 4) + f"\nv_add_f32_dpp v24, v24, v24 {ROWM[3]} {DPPF}\nv_add_f32 v33, v134, v135")
    a(dp(32, 160, 161, 8) + "\nv_permlane16_swap_b32 v24, v25\n" + dp(33, 142, 143, 2))
    a("v_add_f32 v24, v24, v25\nv_mul_f32 v24, 0x3b000000, v24\n" + dp(33, 158, 159, 4))
    a("s_mov_b32 s30, 0x3727c5ac\nv_permlane32_swap_b32 v24, v25\n" + dp(33, 166, 167, 8))
    a("v_fma_f32 v25, -v24, v24, v25\nv_add_f32 v32, v32, v33\nv_max_f32 v25, 0, v25\nv_cvt_pk_bf16_f32 v25, 0, v25\nv_permlane32_swap_b32 v32, v33\nv_add_f32 v25, s30, v25\nv_add_f32 v32, v32, v33")
    a("v_cvt_pk_bf16_f32 v25, 0, v25\nv_sqrt_f32 v25, v25\nv_permlane16_swap_b32 v32, v33\nv_cvt_pk_bf16_f32 v25, 0, v25\nv_rcp_f32 v25, v25\nv_cvt_pk_bf16_f32 v24, 0, v24\nv_add_f32 v32, v32, v33\nv_fma_f32 v32, -v24, v27, v32")
    a("v_fma_f32 v32, v32, v25, v61\nv_max_f32 v32, 0, v32\nv_mul_f32 v32, v32, v32\nv_cvt_pk_bf16_f32 v32, v32, v32")
    a(f"s_mov_b64 exec, 0xffff\nds_write_b16 v21, v32\ns_mov_b64 exec, -1\ns_cmp_ge_u32 s28, 8\ns_waitcnt lgkmcnt(0)\ns_barrier\ns_cbranch_scc1 {LV_(1)}")
    stamp(8)
    a(f"s_lshl_b32 s26, s28, 8\ns_lshl_b32 s27, s3, 6\ns_add_u32 s26, s26, s27\ns_add_u32 s26, s26, {WS_H5}\ns_add_u32 s27, s26, 65536\nv_lshlrev_b32 v60, 16, v60\nv_mov_b64 v[52:53], 0\n" + settag(54))
    a("s_mov_b32 s24, -1\ns_mov_b32 s25, 0xffff\ns_mov_b32 s20, 0x000f000f\ns_mov_b32 s21, 0x000f000f\ns_barrier")
    for i in range(h5d or 0): a("s_nop 15")
    poll([(44, 30, "s26"), (52, 30, "s27")], chk_tag2, last="s[24:25]")
    stamp(10)
    sum4(48, (44, 52))
    a(f"v_add_f32_dpp v48, v48, v48 row_ror:4 {DPPF}\nv_add_f32_dpp v48, v48, v48 row_ror:8 {DPPF}")
    a("v_cvt_pk_bf16_f32 v48, 0, v48\nv_add_f32 v48, v48, v62\nv_cvt_pk_bf16_f32 v48, 0, v48\nv_add_f32 v48, v48, v60\nv_cvt_pk_bf16_f32 v48, v48, v48")
    a("s_mov_b64 exec, s[20:21]\nglobal_store_short v22, v48, s[52:53]")
    stamp(11)
    if amp:
        a(f"s_or_b32 s26, s29, s3\ns_cbranch_scc1 L_end\ns_waitcnt lgkmcnt(0)\ns_sub_u32 s26, s{streg(amp[1])}, s{streg(amp[0])}\ns_mul_i32 s26, s26, {amp[2] if len(amp) > 2 else 10}\ns_min_u32 s26, s26, 100000")
        a("s_memrealtime s[24:25]\ns_waitcnt lgkmcnt(0)\nL_amp:\ns_memrealtime s[22:23]\ns_waitcnt lgkmcnt(0)\ns_sub_u32 s27, s22, s24\ns_cmp_lt_u32 s27, s26\ns_cbranch_scc1 L_amp")
    a(leave(0))
    a("L_f2:\ns_cmp_lg_u32 s3, 5\ns_cbranch_scc1 L_f4")
    a("s_cmp_lg_u32 s2, 251\ns_cbranch_scc1 L_f3\ns_mov_b64 exec, 1\nbuffer_store_dword v61, v0, s[8:11], 0 offen sc1\ns_mov_b64 exec, -1")
    a("L_f3:\ns_cmp_lg_u32 s5, 30\ns_cbranch_scc1 L_f4\nbuffer_wbl2 sc1")
    a("L_f4:\ns_barrier")
    stamp(8)
    a("ds_read_b128 v[16:19], v13\ns_waitcnt lgkmcnt(0)")
    for j in range(8):
        a(smf(DA[j], 16, WW+8*j))
        if j >= 6: a(f"v_add_f32 v{32+2*(j-6)}, v{DA[2*(j-6)]}, v{DA[2*(j-6)]+1}\nv_add_f32 v{33+2*(j-6)}, v{DA[2*(j-6)+1]}, v{DA[2*(j-6)+1]+1}")
    for j in range(4, 8): a(dp(28+j, DA[j], DA[j]+1, 10))
    a("v_cvt_pk_bf16_f32 v36, v32, v33\nv_cvt_pk_bf16_f32 v37, v34, v35\nbuffer_store_dwordx4 v[36:39], v3, s[8:11], s31 offen sc1")
    stamp(9)
    if h5d is None: a("s_waitcnt vmcnt(0)")
    a("s_barrier\n" + leave(0))
    for t in stubs: a(t)
    if stamps:
        a("L_fin4:\ns_barrier\nL_fin3:\ns_barrier\nL_fin2:\ns_barrier\nL_fin1:\ns_barrier\nL_fin0:")
        a("s_mov_b64 exec, -1\ns_memrealtime s[90:91]\ns_waitcnt lgkmcnt(0)\nv_mov_b32 v8, 0")
        for i in range(12): a(f"v_writelane_b32 v8, s{streg(i)}, {i}")
        a("v_writelane_b32 v8, s90, 15")
        a(f"s_mul_i32 s90, s2, 9\ns_add_u32 s90, s90, s3\ns_lshl_b32 s90, s90, 6\ns_add_u32 s90, s90, {WS_ST}")
        a("v_lshlrev_b32 v9, 2, v0\ns_mov_b64 exec, 0xffff\nbuffer_store_dword v8, v9, s[8:11], s90 offen sc1")
    a("L_end:\ns_endpgm")
    a(".fill 384, 4, 0xbf810000")
    return wrap(DOC.lstrip("\n") + a.text(), 256, 576, LDS_BYTES, 168)

if __name__ == "__main__":
    for a_ in sys.argv[1:]:
        name, kw = a_.split(":") if ":" in a_ else (a_, "")
        open(name + ".s", "w").write(gen(**eval("dict(%s)" % kw)))
```

```python
import sys
from asmlib import *

WS_FL, WS_H1, WS_H1B, WS_H2A, WS_H3, WS_H5, WS_ST, WS_H2B = 0x8000, 0x20000, 0x40000, 0x80000, 0x100000, 0x140000, 0x180000, 0x200000
LK, LV, LO, LW1, LW2, SB = 16384, 65536, 114688, 16384, 81920, 147456
LDS_BYTES = SB + 8192
PP, WB, QB, QP = 464, 1536, 4096, 320
LOG2E, SCALE = 0x3fb8aa3b, 0x3db504f3
POLL_MAX = 20000
KV0 = (65536-4096)*256
OOB = 0x1ffff80

DOC = """
"""

def gen(stamps=False, amp=None, fine=None, fast=True, win=6, k0=6, fw1="3"*9+"-"*7, p2=4, xw=3, h5d=None, dly0=0):
    a = Asm()
    nt = "nt"
    streg = lambda i: 60+2*i if i < 10 else 96+2*(i-10)
    def stamp(i):
        if fine == "T":
            if i in (5, 7, 9, 10, 11): a(f"s_memtime s[{streg(i)}:{streg(i)+1}]")
        elif stamps or (amp and i in amp): a(f"s_memrealtime s[{streg(i)}:{streg(i)+1}]")
    DPPF = "row_mask:0xf bank_mask:0xf"
    uid = [0]; stubs = []
    def lab(p):
        uid[0] += 1
        return f"L_{p}_{uid[0]}"
    def lg(n): return f"s_waitcnt lgkmcnt({n})"
    def zero(r, n):
        for i in range(0, n, 2): a(f"v_mov_b64 v[{r+i}:{r+i+1}], 0")
    def redscat4(b):
        a(f"v_permlane32_swap_b32 v{b}, v{b+2}\nv_permlane32_swap_b32 v{b+1}, v{b+3}")
        a(f"v_add_f32 v{b}, v{b}, v{b+2}\nv_add_f32 v{b+1}, v{b+1}, v{b+3}")
        a(f"v_permlane16_swap_b32 v{b}, v{b+1}\nv_add_f32 v{b}, v{b}, v{b+1}")
    def redscat8(b):
        for i in range(4): a(f"v_permlane32_swap_b32 v{b+i}, v{b+4+i}")
        for i in (0, 2, 1, 3): a(f"v_add_f32 v{b+i}, v{b+i}, v{b+4+i}")
        for i in range(2): a(f"v_permlane16_swap_b32 v{b+i}, v{b+2+i}")
        for i in range(2): a(f"v_add_f32 v{b+i}, v{b+i}, v{b+2+i}")
        for i in range(2): a(f"v_add_f32_dpp v{b+i}, v{b+i}, v{b+i} row_ror:8 {DPPF}")
    ROWM = ("quad_perm:[1,0,3,2]", "quad_perm:[2,3,0,1]", "row_half_mirror", "row_mirror")
    def rowred(op, x):
        for m in ROWM: a(f"{op}_dpp v{x}, v{x}, v{x} {m} {DPPF}")
    def unpack(dst, src, msk):
        for i in range(4): a(f"v_lshlrev_b32 v{dst+2*i}, 16, v{src+i}\nv_and_b32 v{dst+2*i+1}, v{msk}, v{src+i}")
    def layernorm(src, f, dst, msk):
        unpack(f, src, msk)
        s1, s2, t1, t2 = f+8, f+9, f+10, f+11
        a(f"v_pk_mul_f32 v[{t1}:{t2}], v[{f}:{f+1}], v[{f}:{f+1}]\nv_pk_add_f32 v[{s1}:{s2}], v[{f}:{f+1}], v[{f+2}:{f+3}]")
        for i in (2, 4, 6):
            a(f"v_pk_fma_f32 v[{t1}:{t2}], v[{f+i}:{f+i+1}], v[{f+i}:{f+i+1}], v[{t1}:{t2}]")
            if i > 2: a(f"v_pk_add_f32 v[{s1}:{s2}], v[{s1}:{s2}], v[{f+i}:{f+i+1}]")
        a(f"v_add_f32 v{s1}, v{s1}, v{s2}\nv_add_f32 v{s2}, v{t1}, v{t2}")
        a(f"v_permlane32_swap_b32 v{s1}, v{s2}\nv_add_f32 v{s1}, v{s1}, v{s2}")
        rowred("v_add_f32", s1)
        a(f"v_mov_b32 v{s2}, v{s1}\nv_permlane16_swap_b32 v{s2}, v{s1}\nv_add_f32 v{s1}, v{s1}, v{s2}")
        a(f"v_mul_f32 v{s1}, 0x3b000000, v{s1}\nv_mov_b32 v{s2}, v{s1}\nv_permlane32_swap_b32 v{s1}, v{s2}")
        a(f"v_fma_f32 v{s2}, -v{s1}, v{s1}, v{s2}\nv_cvt_pk_bf16_f32 v{s1}, 0, v{s1}")
        a(f"v_max_f32 v{s2}, 0, v{s2}\nv_cvt_pk_bf16_f32 v{s2}, 0, v{s2}")
        a(f"v_add_f32 v{s2}, 0x3727c5ac, v{s2}\nv_cvt_pk_bf16_f32 v{s2}, 0, v{s2}")
        a(f"v_sqrt_f32 v{s2}, v{s2}")
        for i in (0, 2): a(f"v_pk_add_f32 v[{f+i}:{f+i+1}], v[{f+i}:{f+i+1}], v[{s1}:{s1+1}] op_sel_hi:[1,0] neg_lo:[0,1] neg_hi:[0,1]")
        a(f"v_cvt_pk_bf16_f32 v{s2}, 0, v{s2}\nv_rcp_f32 v{t1}, v{s2}")
        for i in (4, 6): a(f"v_pk_add_f32 v[{f+i}:{f+i+1}], v[{f+i}:{f+i+1}], v[{s1}:{s1+1}] op_sel_hi:[1,0] neg_lo:[0,1] neg_hi:[0,1]")
        for i in range(8): a(f"v_cvt_pk_bf16_f32 v{f+i}, 0, v{f+i}")
        for i in (0, 2, 4, 6): a(f"v_pk_mul_f32 v[{f+i}:{f+i+1}], v[{f+i}:{f+i+1}], v[{t1}:{t1+1}] op_sel_hi:[1,0]")
        for i in range(4): a(f"v_cvt_pk_bf16_f32 v{dst+i}, v{f+2*i}, v{f+2*i+1}")
    IDX = 150
    def smf(d, act, w): return f"v_smfmac_f32_16x16x64_bf16 v[{d}:{d+3}], v[{act}:{act+3}], v[{w}:{w+7}], v{IDX}"
    dp = lambda d, x, y, rows: f"v_add_f32_dpp v{d}, v{x}, v{y} quad_perm:[0,1,2,3] row_mask:{hex(rows)} bank_mask:0xf"
    def trsetup():
        a("v_and_b32 v14, 8, v0\nv_lshlrev_b32 v15, 3, v14\nv_lshl_add_u32 v14, v14, 9, v15")
        a("v_lshl_add_u32 v14, v11, 9, v14\nv_and_b32 v15, 1, v11\nv_lshl_add_u32 v14, v15, 5, v14")
        a("v_and_b32 v15, 4, v0\nv_lshl_add_u32 v14, v15, 5, v14\nv_and_b32 v15, 3, v0\nv_lshl_add_u32 v14, v15, 3, v14")
        a(f"v_and_b32 v15, 1, v0\nv_mul_u32_u24 v15, 0xaaaa, v15\nv_add_u32 v{IDX}, 0x4444, v15")
    def trread(n, dst, addr, base=0):
        for m in range(n):
            for q in range(4): a(f"ds_read_b64_tr_b16 v[{dst+8*m+2*q}:{dst+8*m+2*q+1}], v{addr} offset:{base + m*8192 + (q>>1)*2048 + (q&1)*256}")
    def poll(loads, chk, last=None, each=None, mid=None):
        L, D = lab("poll"), lab("done")
        n = len(loads)
        m = lambda i: f"s[{80+2*i}:{81+2*i}]"
        ld = lambda dst, voff, soff: f"buffer_load_dwordx4 v[{dst}:{dst+3}], v{voff}, s[8:11], {soff} offen sc1"
        for i, g_ in enumerate(loads):
            if last and i == n-1: a(f"s_mov_b64 exec, {last}")
            a(ld(*g_))
        if last: a("s_mov_b64 exec, -1")
        a(f"s_movk_i32 s58, {POLL_MAX}")
        if mid: mid()
        a(f"s_branch {L}w\n{L}:")
        if each: a(each)
        for i, g_ in enumerate(loads):
            sk = lab("sk")
            a(f"s_mov_b64 exec, {m(i) if n > 1 else 'vcc'}")
            if n > 1: a(f"s_cbranch_execz {sk}")
            a(ld(*g_) + f"\n{sk}:")
        a(f"s_mov_b64 exec, -1\ns_sub_u32 s58, s58, 1\ns_cbranch_scc1 {D}t\n{L}w:\ns_waitcnt vmcnt(0)")
        stubs.append(f"{D}t:\ns_waitcnt vmcnt(0)\ns_branch {D}")
        if n == 1: a(chk(loads[0][0], "vcc") + f"\ns_cbranch_vccnz {L}")
        else:
            for i, g_ in enumerate(loads): a(chk(g_[0], m(i)))
            a(f"s_or_b64 s[56:57], {m(0)}, {m(1)}")
            for i in range(2, n): a(f"s_or_b64 s[56:57], s[56:57], {m(i)}")
            a(f"s_cbranch_scc1 {L}")
        a(f"{D}:")
    chk_tag = lambda d, o: f"v_cmp_ne_u32 {o}, s7, v{d+3}"
    chk_tag2 = lambda d, o: f"v_cmp_ne_u64 {o}, s[6:7], v[{d+2}:{d+3}]"
    chk_sen = lambda d, o: f"v_cmp_eq_u32 {o}, -1, v{d+3}"
    TAG = "s_mul_i32 s7, s6, 0x9E3779B1\ns_add_u32 s7, s7, 0x7F4A7C15\ns_bitset0_b32 s7, 31\ns_mul_i32 s6, s6, 0x85EBCA6B\ns_add_u32 s6, s6, 0x165667B1"
    settag = lambda r: f"v_mov_b32 v{r}, s6\nv_mov_b32 v{r+1}, s7"
    WF = 112
    def osetup():
        a(f"s_lshr_b32 s46, s3, 2\ns_lshl_b32 s44, s4, 16\ns_lshl_b32 s45, s46, 15\ns_add_u32 s44, s44, s45\ns_lshr_b32 s45, s5, 3\ns_lshl_b32 s45, s45, 9\ns_add_u32 s44, s44, s45\ns_lshl_b32 s45, s18, 7\ns_add_u32 s44, s44, s45\ns_add_u32 s44, s44, {WS_H2A}\ns_add_u32 s45, s44, 16384")
        a("v_and_b32 v152, 0x70, v2\nv_lshl_add_u32 v152, v8, 11, v152")
        a(f"s_lshl_b32 s47, s46, 9\ns_lshl_b32 s48, s18, 6\ns_add_u32 s47, s47, s48\ns_add_u32 s47, s47, {SB}")
        a("v_and_b32 v153, 32, v0\nv_and_b32 v154, 3, v0\nv_lshl_add_u32 v153, v154, 3, v153\nv_and_b32 v154, 1, v11\nv_lshl_add_u32 v153, v154, 2, v153\nv_and_b32 v154, 4, v0\nv_lshl_add_u32 v153, v154, 6, v153\nv_add_u32 v153, s47, v153")
        a(f"s_lshl_b32 s47, s46, 6\ns_add_u32 s47, s47, {SB+WB}\nv_lshlrev_b32 v154, 5, v154\nv_lshl_add_u32 v154, v8, 2, v154\nv_add_u32 v154, s47, v154")
        a("s_mov_b32 s48, -1\ns_min_u32 s49, s46, s4\ns_sub_u32 s49, s49, 1\nv_mov_b32 v155, 0xffff0000")
        zero(156, 4)
    def locflag(r):
        a(f"v_or3_b32 v{r}, v{r}, v{r+1}, v{r+2}\nv_or_b32 v{r}, v{r}, v{r+3}\nv_readfirstlane_b32 s59, v{r}")
    def h5base(sreg, st):
        a(f"s_lshl_b32 s{sreg}, s29, 11\ns_and_b32 s{st}, s{sreg}, 0xe000\ns_add_u32 s{sreg}, s{sreg}, s{st}\ns_add_u32 s{sreg}, s{sreg}, {WS_H5}")
    def leave(nbar):
        return f"s_branch L_fin{nbar}" if stamps else "s_endpgm"
    LV_ = lambda nbar: f"L_fin{nbar}" if stamps else "L_end"

    a("; ---- prologue ----")
    if stamps:
        for i in range(1, 12): a(f"s_mov_b32 s{streg(i)}, 0")
    if dly0: a("s_and_b32 s4, s2, 7\ns_cbranch_scc1 L_nd0\n" + "s_nop 15\n" * dly0 + "L_nd0:")
    stamp(0)
    a("s_load_dwordx8 s[32:39], s[0:1], 0")
    a("s_cmp_lt_u32 s2, 240\ns_cbranch_scc1 L_npf\nv_cmp_gt_u32 vcc, 92, v0\ns_and_b64 exec, exec, vcc\ns_cbranch_execz L_npf2")
    a("s_getpc_b64 s[16:17]\nv_lshlrev_b32 v3, 7, v0\nglobal_load_dword v20, v3, s[16:17] offset:512\nL_npf2:\ns_mov_b64 exec, -1\nL_npf:")
    a("v_lshrrev_b32 v1, 6, v0\nv_and_b32 v0, 63, v0\ns_cmp_ge_u32 s2, 256\nv_readfirstlane_b32 s3, v1\ns_cbranch_scc1 L_end")
    a("s_lshr_b32 s5, s2, 3\ns_and_b32 s4, s2, 7\ns_cselect_b32 s100, s5, 0\ns_and_b32 s18, s3, 3\ns_mov_b32 s10, 0x400000\ns_mov_b32 s11, 0x20000")
    a("v_lshlrev_b32 v2, 4, v0\nv_and_b32 v10, 15, v0\nv_lshrrev_b32 v11, 4, v0")
    a("v_lshrrev_b32 v8, 3, v0\nv_and_b32 v9, 32, v0\nv_and_b32 v3, 0x70, v2\nv_xor_b32 v9, v9, v3")
    a(f"s_and_b32 s29, s5, 3\ns_mov_b32 s14, {512*4096*2}\ns_mov_b32 s15, 0x20000\ns_cmp_lt_u32 s3, 4\ns_cbranch_scc0 L_lw")
    a("s_load_dwordx2 s[8:9], s[0:1], 96")
    a("s_mul_i32 s25, s5, 37\ns_lshr_b32 s25, s25, 8\ns_mul_i32 s24, s25, 7\ns_sub_u32 s24, s5, s24\ns_cmp_ge_u32 s24, 3\ns_addc_u32 s24, s24, 0")
    a("s_cmp_ge_u32 s5, 28\ns_cselect_b32 s25, s29, s25\ns_cselect_b32 s24, 3, s24")
    a("v_lshlrev_b32 v12, 6, v10\nv_lshl_add_u32 v12, v11, 4, v12\ns_lshl_b32 s28, s25, 8\nv_xor_b32 v13, s28, v12")
    a("s_and_b32 s20, s3, 1\ns_lshl_b32 s21, s20, 6\nv_lshl_add_u32 v14, v8, 13, v9\nv_xor_b32 v14, s21, v14")
    a("s_lshl_b32 s26, s25, 20\ns_lshl_b32 s27, s3, 18\ns_add_u32 s26, s26, s27\ns_lshl_b32 s27, s4, 10\ns_add_u32 s26, s26, s27\ns_lshl_b32 s27, s24, 7\ns_add_u32 s26, s26, s27\ns_lshl_b32 m0, s3, 12")
    a(f"s_lshl_b32 s20, s4, 14\ns_lshl_b32 s21, s25, 12\ns_add_u32 s20, s20, s21\ns_lshl_b32 s21, s24, 9\ns_add_u32 s20, s20, s21\ns_lshl_b32 s21, s3, 7\ns_add_u32 s20, s20, s21\ns_add_u32 s21, s20, {WS_H1B}\ns_add_u32 s20, s20, {WS_H1}")
    a("v_mov_b64 v[4:5], -1\nv_mov_b64 v[6:7], -1\nv_lshlrev_b32 v3, 7, v0")
    a("s_cmp_lg_u32 s3, 0\ns_waitcnt lgkmcnt(0)\ns_cbranch_scc1 L_nx\nglobal_load_dwordx4 v[16:19], v13, s[32:33]\nL_nx:\ns_mov_b32 s12, s38\ns_mov_b32 s13, s39")
    stamp(8)
    if amp: stamp(6)
    for i in range(4):
        a(f"buffer_load_dwordx4 v14, s[12:15], s26 offen offset:{i*1024} {nt} lds")
        if i < 3: a(f"s_add_u32 s26, s26, {65536-1024}")
    a(f"s_lshl_b32 s22, s4, 5\ns_add_u32 s22, s22, s5\ns_lshl_b32 s23, s22, 11\ns_add_u32 s23, s23, {WS_H2A}\ns_lshl_b32 s22, s22, 7\ns_add_u32 s22, s22, {WS_FL}\ns_sub_u32 s26, s20, 256")
    a(f"s_cmp_eq_u32 s3, 2\ns_cselect_b32 s26, s26, s22\ns_cselect_b32 s16, 15, 1\ns_cmp_eq_u32 s3, 1\ns_cselect_b32 s26, s23, s26\ns_cselect_b32 s16, 0x1ff, s16\ns_cselect_b32 s23, s23, {OOB}\ns_mov_b32 s17, 0")
    a("buffer_store_dwordx4 v[4:7], v2, s[8:11], s23 offen\ns_mov_b64 exec, s[16:17]\nbuffer_load_dword v159, v3, s[8:11], s26 offen sc1")
    a("s_mov_b64 exec, -1")
    a("s_barrier\ns_branch L_cw")

    a("L_lw:\ns_cmp_eq_u32 s3, 8\ns_cbranch_scc0 L_lw2\ns_cmp_ge_u32 s100, 28\ns_cselect_b32 s12, 0, s5\ns_cmp_ge_u32 s12, 16\ns_cbranch_scc1 L_end\ns_barrier\ns_branch L_w8")
    a("L_lw2:\ns_cmp_ge_u32 s100, 28")
    a("s_cbranch_scc1 L_lf")
    a("s_mul_i32 s16, s5, 5\ns_sub_u32 s16, s16, 12\ns_mov_b32 s19, 1\ns_mul_i32 s17, s5, 6\ns_sub_u32 s17, s17, 32\ns_cmp_lt_u32 s5, 20\ns_cselect_b32 s16, s17, s16\ns_cselect_b32 s19, 2, s19")
    a("s_lshl_b32 s17, s5, 2\ns_cmp_lt_u32 s100, 16\ns_cselect_b32 s16, s17, s16\ns_cselect_b32 s19, 0, s19")
    a(f"s_lshl_b32 s17, s4, 24\ns_lshl_b32 s27, s18, 15\ns_add_u32 s17, s17, s27\ns_add_u32 s17, s17, {KV0}\ns_lshl_b32 s27, s18, 11\ns_mov_b32 s30, {8*65536*256}\ns_mov_b32 s31, 0x20000")
    UO = [52, 53, 54, 55, 56, 57]
    def uoff(k):
        r = UO[k]
        a(f"s_lshr_b32 s21, s16, 4\ns_lshl_b32 s{r}, s21, 17\ns_xor_b32 s21, s21, s16\ns_and_b32 s21, s21, 3\ns_lshl_b32 s21, s21, 13\ns_add_u32 s{r}, s{r}, s21\ns_and_b32 s21, s16, 12\ns_lshl_b32 s21, s21, 9\ns_add_u32 s{r}, s{r}, s21\ns_add_u32 s{r}, s{r}, s17\ns_add_u32 s16, s16, 1")
    NP = (k0 + 1) // 2
    for k in range(NP): uoff(k)
    a("s_and_b32 s20, s18, 1\ns_lshl_b32 s20, s20, 7\nv_xor_b32 v6, s20, v2\nv_lshlrev_b32 v4, 4, v11\nv_xor_b32 v4, v4, v6\nv_xor_b32 v5, 64, v4\nv_lshlrev_b32 v7, 5, v11\nv_xor_b32 v6, v7, v6")
    VF, PF = 64, 16
    def lsetup():
        a("; addresses of the later phases, while the q partial is being made")
        a("s_load_dwordx2 s[8:9], s[0:1], 96\ns_load_dwordx2 s[40:41], s[0:1], 32\ns_load_dwordx2 s[42:43], s[0:1], 64\ns_load_dwordx2 s[32:33], s[0:1], 48")
        a("v_lshrrev_b32 v112, 2, v10\nv_and_b32 v113, 1, v11\nv_lshl_add_u32 v113, v113, 2, v112\ns_lshl_b32 s12, s18, 1\nv_xor_b32 v113, s12, v113\nv_lshlrev_b32 v113, 5, v113")
        a(f"v_lshl_add_u32 v112, v11, 3, v112\nv_lshl_add_u32 v112, v112, 8, v113\nv_and_b32 v13, 3, v0\nv_lshl_add_u32 v112, v13, 3, v112\nv_add_u32 v112, {LV}, v112\nv_xor_b32 v113, 32, v112")
        a(f"v_mul_u32_u24 v114, {PP}, v13\nv_lshl_add_u32 v114, v11, 4, v114\nv_add_u32 v114, {SB+2048}, v114")
        a("v_and_b32 v3, 1, v0\nv_lshlrev_b32 v3, 6, v3\nv_lshl_add_u32 v3, v11, 4, v3\nv_and_b32 v12, 2, v0\nv_lshl_add_u32 v3, v12, 8, v3")
        a(f"s_lshl_b32 s24, s4, 16\ns_lshl_b32 s25, s5, 11\ns_add_u32 s24, s24, s25\ns_lshl_b32 s25, s18, 7\ns_add_u32 s24, s24, s25\ns_add_u32 s25, s24, {WS_H2B}\ns_add_u32 s24, s24, {WS_H2A}")
        a("s_mov_b32 s50, 0x000f000f\ns_mov_b32 s51, 0x000f000f\ns_waitcnt lgkmcnt(0)\ns_load_dword s6, s[8:9], 0")
        zero(40, 12)
        for i in range(4): a(f"v_mov_b32 v{52+i}, 0x3f803f80")
        a(f"v_mov_b32 v116, {SB+1152}\nv_lshlrev_b32 v115, 4, v13\nv_add_u32 v115, {SB+1024}, v115\ns_mul_i32 s12, s18, 0x70\ns_sub_u32 s26, s25, s12")
        a(f"s_lshl_b32 s22, s18, 2\ns_add_u32 s22, s22, {SB+1152}\nv_mov_b32 v1, s22")
        osetup()
        a("s_sub_u32 s12, s5, 16\ns_mul_i32 s13, s12, 43\ns_lshr_b32 s13, s13, 7\ns_mul_i32 s22, s13, 3\ns_sub_u32 s34, s12, s22\ns_add_u32 s12, s34, 1")
        a("s_lshl_b32 s22, s4, 2\ns_add_u32 s13, s13, s22\ns_sub_u32 s13, s13, 4\ns_bfe_u32 s22, s13, 0x20001\ns_xor_b32 s12, s12, s22\ns_lshl_b32 s12, s12, 13\ns_cmp_lg_u32 s4, 0\ns_cselect_b32 s38, -1, 0\ns_mov_b32 s39, 0\ns_lshl_b32 s23, s13, 7\ns_lshl_b32 s13, s13, 16\ns_add_u32 s12, s12, s13")
        a("s_lshr_b32 s13, s18, 1\ns_lshl_b32 s13, s13, 15\ns_add_u32 s12, s12, s13\ns_and_b32 s13, s18, 1\ns_lshl_b32 s13, s13, 12\ns_add_u32 s12, s12, s13\nv_lshl_add_u32 v117, v0, 7, s12")
        a(f"v_xor_b32 v119, 0x6000, v117\ns_lshl_b32 s12, s34, 2\ns_add_u32 s12, s12, s18\ns_mul_i32 s12, s12, {32*3584}\ns_add_u32 s12, s12, s23\ns_add_u32 s12, s12, {256*3584}\nv_mul_u32_u24 v120, 3584, v0\nv_add_u32 v120, s12, v120")
        a("s_waitcnt lgkmcnt(0)\n" + TAG + "\n" + settag(146))
    a("s_waitcnt lgkmcnt(0)\ns_mov_b32 s28, s34\ns_mov_b32 s29, s35")
    stamp(1)
    def unit(k, lds, regs, first, hook=None):
        a(f"s_add_u32 m0, s27, {lds + k*8192}")
        for j in range(2):
            n = first + j
            if n >= max(k0, win): a(f"s_waitcnt vmcnt({win-1})")
            if hook: hook(n)
            a(f"buffer_load_dwordx4 v{regs[j]}, s[28:31], s{UO[k]} offen offset:{j*1024} {nt} lds")
    def kflag(cls=None):
        if cls is not None:
            sk = lab("kf"); a(f"s_cmp_lg_u32 s19, {cls}\ns_cbranch_scc1 {sk}")
        a("s_mov_b64 exec, 1\nds_write_b32 v1, v1\ns_mov_b64 exec, -1"); stamp(6)
        if cls is not None: a(f"{sk}:")
    assert 5 <= win <= 7 and k0 < 8
    assert k0 % 2 == 0
    a("s_barrier")
    for k in range(k0 // 2): unit(k, LK, (4, 5), 2*k)
    for kk in range(NP, 6): uoff(kk)
    lsetup()
    a("s_barrier"); stamp(3)
    a("s_barrier")
    for k in range(k0 // 2, 4): unit(k, LK, (4, 5), 2*k)
    a("s_cmp_lt_u32 s5, 16\ns_cbranch_scc0 L_xk")
    a("s_lshl_b32 s22, s4, 1\ns_lshr_b32 s23, s5, 3\ns_add_u32 s22, s22, s23\ns_and_b32 s21, s22, 3\ns_lshl_b32 s23, s18, 2\ns_add_u32 s21, s21, s23\ns_lshl_b32 s22, s22, 18\ns_lshl_b32 s23, s21, 13\ns_add_u32 s22, s22, s23\ns_and_b32 s23, s5, 7\ns_lshl_b32 s23, s23, 7\ns_add_u32 s22, s22, s23")
    a(f"s_lshl_b32 s23, s21, 10\ns_add_u32 s23, s23, {LO}\ns_mov_b32 s12, s40\ns_mov_b32 s13, s41\ns_lshr_b32 s20, s20, 1\nv_lshl_add_u32 v12, v8, 10, v9\nv_xor_b32 v12, s20, v12")
    for i in range(8):
        if i == 4: a("s_add_u32 s23, s23, 16384")
        a(f"s_xor_b32 m0, s23, {(i&3)<<10}\ns_xor_b32 s21, s22, {((i&3)<<13) + ((i>>2)<<17)}\ns_waitcnt vmcnt({win-1})")
        if i == win - 1: kflag()
        a(f"buffer_load_dwordx4 v12, s[12:15], s21 offen {nt} lds")
    a("L_xw:\ns_mov_b32 s28, s36\ns_mov_b32 s29, s37\ns_branch L_vm")
    a("L_xk:\ns_cmp_eq_u32 s19, 0\ns_cbranch_scc1 L_xw")
    unit(4, LK, (4, 5), 99)
    a("s_cmp_eq_u32 s19, 1\ns_cbranch_scc1 L_xv")
    unit(5, LK, (4, 5), 99)
    a("s_mov_b32 s28, s36\ns_mov_b32 s29, s37")
    unit(5, LV, (6, 6), 99)
    a("L_xv:\ns_mov_b32 s28, s36\ns_mov_b32 s29, s37")
    unit(4, LV, (6, 6), 99)
    a("L_vm:")
    def hookK(n):
        if n == 100 + win - 5: kflag(2)
        if n == 100 + win - 3: kflag(1)
        if n == 100 + win - 1: kflag(0)
    for k in range(4): unit(k, LV, (6, 6), 100 + 2*k, hookK)
    stamp(2)
    def vread(t):
        for tl in range(2):
            for h in range(2):
                d = VF + 8*t + 4*tl + 2*h
                a(f"ds_read_b64_tr_b16 v[{d}:{d+1}], v{112+tl} offset:{t*8192 + h*1024}")
    def vmfma(t, cnt=None):
        for tl in range(2):
            if cnt is not None: a(lg(cnt.pop(0)))
            d = 40 + 4*tl
            a(f"v_mfma_f32_16x16x32_bf16 v[{d}:{d+3}], v[{VF+8*t+4*tl}:{VF+8*t+4*tl+3}], v[{PF+4*t}:{PF+4*t+3}], v[{d}:{d+3}]")
    def lsum(t): a(f"v_mfma_f32_16x16x32_bf16 v[48:51], v[52:55], v[{PF+4*t}:{PF+4*t+3}], v[48:51]")
    a("s_waitcnt vmcnt(6)\ns_barrier")
    stamp(4)
    for t in range(4): a(f"ds_read_b128 v[{PF+4*t}:{PF+4*t+3}], v114 offset:{t*64}")
    a("ds_read_b128 v[56:59], v115\nds_read_b128 v[60:63], v116 offset:32")
    vread(0)
    a("s_cmp_eq_u32 s19, 0\ns_cbranch_scc1 L_nox")
    a(f"ds_read_b128 v[{PF+16}:{PF+19}], v114 offset:256")
    vread(4)
    a("s_cmp_eq_u32 s19, 1\ns_cbranch_scc1 L_x1")
    a(f"ds_read_b128 v[{PF+20}:{PF+23}], v114 offset:320")
    vread(5)
    a("s_waitcnt lgkmcnt(0)"); vmfma(5); lsum(5)
    a("L_x1:\ns_waitcnt lgkmcnt(0)"); vmfma(4); lsum(4)
    a("L_nox:\ns_waitcnt vmcnt(4)\ns_barrier")
    vread(1)
    a(lg(4))
    vmfma(0)
    for t in range(4): lsum(t)
    locflag(60)
    a("s_waitcnt vmcnt(2)\ns_barrier")
    vread(2)
    a(lg(4)); vmfma(1)
    a("s_cmp_lg_u32 s3, 4\ns_cbranch_scc1 L_noml")
    a("v_max_f32 v56, v56, v57\nv_max3_f32 v144, v56, v58, v59\nv_mov_b32 v145, v48\ns_mov_b64 exec, 15\ns_cmp_eq_u32 s59, 1\ns_cbranch_scc0 L_mlb")
    a("buffer_store_dwordx4 v[144:147], v2, s[8:11], s24 offen offset:1024\nL_mlc:\ns_mov_b64 exec, -1\ns_waitcnt vmcnt(1)\ns_branch L_mld")
    a("L_mlb:\nbuffer_store_dwordx4 v[144:147], v2, s[8:11], s25 offen offset:1024 sc1\ns_branch L_mlc")
    a("L_noml:\ns_waitcnt vmcnt(0)")
    a("L_mld:\ns_barrier")
    stamp(5)
    vread(3)
    a(lg(4)); vmfma(2)
    vmfma(3, [2, 0])
    a("s_mov_b64 exec, s[50:51]\ns_cmp_eq_u32 s59, 1")
    for i in range(4): a(f"v_cvt_pk_bf16_f32 v{12+i}, v{40+2*i}, v{41+2*i}")
    a("s_cbranch_scc0 L_pubb")
    a("buffer_store_dwordx4 v[12:15], v3, s[8:11], s24 offen")
    stamp(7)
    a("s_mov_b64 exec, -1\ns_cmp_lt_u32 s5, 16\ns_cbranch_scc1 L_ofast")
    a(f"s_mov_b64 exec, s[38:39]\ns_cbranch_execz {LV_(0)}")
    a("s_cmp_lg_u32 s34, 2\ns_cbranch_scc1 L_hz1\nglobal_load_dword v121, v119, s[42:43]\ns_branch L_hz2\nL_hz1:\nglobal_load_dword v121, v120, s[32:33]\nL_hz2:")
    a("global_load_dword v118, v117, s[42:43]\n" + leave(0))
    a("L_pubb:\nbuffer_store_dwordx4 v[12:15], v3, s[8:11], s25 offen sc1")
    a("s_mov_b64 exec, 1\ns_waitcnt vmcnt(0)\nbuffer_store_dwordx4 v[144:147], v2, s[8:11], s26 offen offset:1088 sc1\ns_mov_b64 exec, -1")
    a("s_cmp_lt_u32 s5, 16\ns_cbranch_scc1 L_oslow\n" + leave(0))

    a("; ---- wave 8 ----")
    a("L_w8:\ns_load_dwordx2 s[8:9], s[0:1], 96\ns_waitcnt lgkmcnt(0)\ns_load_dword s6, s[8:9], 0\ns_cmp_lt_u32 s5, 16\ns_cbranch_scc1 L_w8o")
    a(f"s_lshl_b32 s20, s29, 14\ns_and_b32 s21, s4, 3\ns_lshl_b32 s21, s21, 16\ns_add_u32 s20, s20, s21\ns_add_u32 s20, s20, {WS_H3}\ns_lshl_b32 s101, s4, 2\ns_add_u32 s29, s29, s101\ns_sub_u32 s29, s29, 4")
    h5base(21, 13)
    a("s_add_u32 s22, s21, 8192\nv_lshlrev_b32 v13, 7, v10\nv_and_b32 v14, 1, v11\nv_lshl_add_u32 v13, v14, 13, v13\nv_lshlrev_b32 v14, 7, v0\ns_waitcnt lgkmcnt(0)")
    a("s_barrier\ns_barrier\nbuffer_load_dword v16, v13, s[8:11], s21 offen sc1")
    a(TAG + f"\ns_getreg_b32 s6, hwreg(HW_REG_XCC_ID, 0, 4)\ns_lshl_b32 s24, s4, 14\ns_add_u32 s24, s24, {WS_H1}\nv_lshlrev_b32 v4, 9, v0\ns_mov_b32 exec_hi, 0")
    a("s_waitcnt vmcnt(0)\nbuffer_load_dwordx2 v[6:7], v4, s[8:11], s24 offen offset:8 sc1")
    a("s_mov_b32 s16, -1\ns_mov_b32 s17, -1\ns_mov_b32 s19, 1\nL_lat:")
    for r, acc in ((21, 16), (22, 17)):
        a(f"s_memtime s[12:13]\ns_waitcnt lgkmcnt(0)\ns_load_dword s23, s[8:9], s{r} glc\ns_waitcnt lgkmcnt(0)\ns_memtime s[14:15]\ns_add_u32 s{r}, s{r}, 512\ns_waitcnt lgkmcnt(0)\ns_sub_u32 s12, s14, s12\ns_min_u32 s{acc}, s{acc}, s12")
    a("s_sub_u32 s19, s19, 1\ns_cbranch_scc0 L_lat\ns_cmp_lt_u32 s17, s16\ns_cselect_b32 s12, 0x2000, 0")
    if stamps: a(f"s_mov_b32 s{streg(1)}, s16\ns_mov_b32 s{streg(2)}, s17")
    a("s_mov_b64 exec, -1\ns_add_u32 s20, s20, s12\nbuffer_load_dword v16, v14, s[8:11], s20 offen sc1\ns_mov_b32 exec_hi, 0")
    a(f"s_mov_b32 s13, {3 if fast else -1}\ns_waitcnt vmcnt(1)")
    if fast: a("L_lz:\nv_cmp_ne_u64 vcc, s[6:7], v[6:7]\ns_cbranch_vccz L_lzd\ns_sub_u32 s13, s13, 1\ns_cbranch_scc1 L_lzd\nbuffer_load_dwordx2 v[6:7], v4, s[8:11], s24 offen offset:8 sc1\ns_waitcnt vmcnt(0)\ns_branch L_lz\nL_lzd:")
    a(f"v_mov_b32 v12, s12\nv_mov_b32 v13, s13\nv_mov_b32 v15, {SB+1152}\ns_mov_b64 exec, 1\nds_write_b64 v15, v[12:13] offset:16")
    a("s_waitcnt lgkmcnt(0)\ns_barrier\n" + leave(4))
    a("L_w8o:\ns_waitcnt lgkmcnt(0)\ns_barrier\ns_barrier\n" + TAG)
    a(f"v_and_b32 v20, 31, v0\nv_lshlrev_b32 v20, 11, v20\nv_lshrrev_b32 v21, 5, v0\nv_lshl_add_u32 v20, v21, 4, v20\nv_lshlrev_b32 v21, 2, v0\nv_add_u32 v21, {SB+WB}, v21")
    a(f"s_lshl_b32 s22, s4, 16\ns_lshr_b32 s23, s5, 3\ns_lshl_b32 s23, s23, 5\ns_add_u32 s22, s22, s23\ns_add_u32 s22, s22, {WS_H2A+1024}\ns_cmp_eq_u32 s4, 0\ns_cselect_b32 s16, -1, 0x0fffffff\ns_mov_b32 s17, s16")
    a(f"v_mov_b32 v32, 0xff800000\nv_mov_b32 v33, 0\nv_mov_b32 v1, {SB+1152}\n" + settag(34))
    a("s_barrier\nds_read_b128 v[24:27], v1 offset:32\ns_waitcnt lgkmcnt(0)")
    locflag(24)
    a(f"s_cmp_eq_u32 s59, 1\ns_cselect_b32 s23, 0, {WS_H2B-WS_H2A}\ns_add_u32 s22, s22, s23\ns_setprio 3")
    a("s_barrier\ns_barrier\ns_barrier")
    poll([(32, 20, "s22")], chk_tag2, last="s[16:17]")
    stamp(8)
    a(f"v_max_f32_dpp v27, v32, v32 {ROWM[0]} {DPPF}")
    for m in ROWM[1:]: a(f"v_max_f32_dpp v27, v27, v27 {m} {DPPF}")
    a("v_mov_b32 v26, v27\nv_permlane16_swap_b32 v26, v27\nv_max_f32 v27, v27, v26")
    a("v_sub_f32 v32, v32, v27\nv_exp_f32 v28, v32\nv_mul_f32 v30, v33, v28")
    rowred("v_add_f32", 30)
    a("v_mov_b32 v26, v30\nv_permlane16_swap_b32 v26, v30\nv_add_f32 v30, v30, v26")
    a("v_rcp_f32 v30, v30\nv_mul_f32 v28, v28, v30\nds_write_b32 v21, v28")
    stamp(9)
    a(leave(3))

    a("L_cw:\ns_setprio 2\ns_load_dword s6, s[8:9], 0\ns_load_dwordx8 s[40:47], s[0:1], 32\ns_load_dwordx4 s[48:51], s[0:1], 64\ns_load_dwordx2 s[52:53], s[0:1], 80")
    a(f"v_lshlrev_b32 v1, 2, v0\nv_cmp_gt_u32 vcc, 16, v0\nv_add_u32 v1, {SB+1024}, v1\nds_write_b32 v1, v4 offset:{WB-1024}\nv_cndmask_b32 v3, 0, -1, vcc\nds_write_b32 v1, v3")
    trsetup()
    a("s_lshl_b32 s12, s3, 5\nv_xor_b32 v15, s12, v14")
    a("v_mov_b32 v63, 0xffff0000\nv_lshlrev_b32 v144, 3, v0\nv_lshlrev_b32 v145, 7, v0")
    zero(32, 8)
    a(f"s_lshl_b32 s22, s4, 12\ns_lshl_b32 s23, s5, 2\ns_add_u32 s22, s22, s23\ns_add_u32 s22, s22, {WS_FL}")
    a(f"v_mov_b32 v1, {SB+1152}\ns_lshl_b32 s12, s3, 2\nv_add_u32 v148, s12, v1")
    def spin4(off):
        L = lab("spin")
        a(f"{L}:\nds_read_b128 v[24:27], v1 offset:{off}\ns_waitcnt lgkmcnt(0)\nv_min_u32 v28, v24, v25\nv_min3_u32 v28, v28, v26, v27\nv_cmp_eq_u32 vcc, 0, v28\ns_cbranch_vccnz {L}")
    a(f"s_getreg_b32 s15, hwreg(HW_REG_XCC_ID, 0, 4)\nv_add_u32 v3, {SB}, v2\ns_cmp_lg_u32 s3, 0\ns_cbranch_scc1 L_nln\ns_waitcnt vmcnt(6)")
    stamp(2)
    layernorm(16, 20, 16, 63)
    a("ds_write_b128 v3, v[16:19]\nL_nln:")
    a("s_waitcnt lgkmcnt(0)\n" + TAG + "\nv_mov_b32 v58, s15\nv_mov_b32 v59, s7")
    a("s_waitcnt vmcnt(2)\ns_barrier")
    stamp(1)
    a("ds_read_b128 v[16:19], v3")
    trread(2, WF, 15)
    a(lg(4) + "\n" + smf(32, 16, WF) + "\ns_waitcnt lgkmcnt(0)\n" + smf(36, 16, WF+8))
    a("v_pk_add_f32 v[56:57], v[32:33], v[38:39]\nv_add_f32 v56, v56, v57")
    a(f"v_mov_b32_dpp v57, v56 quad_perm:[1,1,3,3] {DPPF}")
    a("s_waitcnt vmcnt(0)\ns_mov_b64 exec, 0x5555\nbuffer_store_dwordx4 v[56:59], v144, s[8:11], s20 offen")
    PUBB = "s_mov_b64 exec, 0x5555\nbuffer_store_dwordx4 v[56:59], v144, s[8:11], s21 offen sc1\ns_mov_b64 exec, -1"
    a("s_cmp_lg_u32 s3, 1\ns_cbranch_scc1 L_nohint\ns_mov_b32 exec_lo, -1\nbuffer_store_dword v59, v145, s[8:11], s22 offen")
    a("L_nohint:\ns_mov_b64 exec, -1\ns_barrier")
    stamp(4)
    a("s_cmp_ge_u32 s100, 28\ns_cbranch_scc1 L_cf")
    if True:
        a("; group 0, s >= 16 (j = s-16): pull rows 256(j>>3) + 128 + 32w + 4(j&7) + 0..3 of its wo rows into L2, and the slow lines 128 rows below")
        a(f"s_cmp_lg_u32 s4, 0\ns_cbranch_scc1 L_nopf0\ns_sub_u32 s13, s5, 16\ns_cbranch_scc1 L_nopf0")
        a("s_lshr_b32 s12, s13, 3\ns_lshl_b32 s12, s12, 18\ns_and_b32 s13, s13, 7\ns_lshl_b32 s13, s13, 12\ns_add_u32 s12, s12, s13\ns_lshl_b32 s13, s3, 15\ns_add_u32 s12, s12, s13")
        a("v_lshlrev_b32 v4, 7, v0\nv_add_u32 v4, 0x20000, v4\ns_mov_b32 exec_lo, 0\nv_lshlrev_b32 v4, 10, v10\nv_add_u32 v4, 0x180, v4\ns_mov_b32 exec_lo, -1\ns_mov_b32 exec_hi, 15\nv_add_u32 v4, s12, v4\nglobal_load_dword v151, v4, s[40:41]\ns_mov_b64 exec, -1\nL_nopf0:")
    a("s_sub_u32 s13, s100, 20\ns_cbranch_scc1 L_nopfo\ns_lshl_b32 s12, s4, 19\ns_lshr_b32 s14, s13, 1\ns_lshl_b32 s14, s14, 17\ns_add_u32 s12, s12, s14\ns_and_b32 s13, s13, 1\ns_lshl_b32 s13, s13, 14\ns_add_u32 s12, s12, s13\ns_lshl_b32 s13, s3, 12\ns_add_u32 s12, s12, s13\ns_add_u32 s12, s12, 0x180")
    a("v_and_b32 v4, 3, v0\nv_lshl_add_u32 v4, v4, 15, s12\nv_and_b32 v5, 12, v0\nv_lshl_add_u32 v4, v5, 8, v4\nglobal_load_dword v151, v4, s[40:41]\nL_nopfo:")
    KF, QF, DR = 64, 16, 32
    a("s_mov_b32 s19, 2\ns_cmp_lt_u32 s5, 20\ns_cselect_b32 s19, 4, s19\ns_cmp_lt_u32 s100, 16\ns_cselect_b32 s19, 0, s19")
    a("s_cmp_lt_u32 s3, s19\ns_cselect_b32 s19, 1, 0\ns_mov_b32 s16, 0x00ff00ff\ns_cselect_b32 s16, 0x0fff0fff, s16\ns_mov_b32 s17, s16")
    a(f"s_lshl_b32 s12, s3, 12\ns_add_u32 s12, s12, {LK}\nv_xor_b32 v4, v10, v11\nv_lshlrev_b32 v4, 4, v4\nv_lshl_add_u32 v4, v10, 8, v4\nv_add_u32 v4, s12, v4\nv_xor_b32 v5, 64, v4\nv_xor_b32 v6, 0x80, v4\nv_xor_b32 v7, 0xc0, v4")
    a(f"v_and_b32 v13, 3, v0\nv_mul_u32_u24 v3, {QP}, v13\nv_lshl_add_u32 v3, v11, 4, v3\nv_add_u32 v3, {SB+QB}, v3")
    a(f"v_mul_u32_u24 v60, {PP}, v13\nv_and_b32 v61, 12, v0\nv_lshl_add_u32 v60, v61, 5, v60\nv_lshl_add_u32 v60, v11, 3, v60\ns_lshl_b32 s12, s3, 5\ns_add_u32 s12, s12, {SB+2048}\nv_add_u32 v60, s12, v60")
    a(f"v_lshlrev_b32 v61, 4, v13\nv_add_u32 v61, {SB+1024}, v61\ns_lshl_b32 s12, s3, 2\nv_add_u32 v62, s12, v61")
    a(f"v_mov_b32 v146, {SCALE}\nv_mov_b32 v147, {LOG2E}\nv_add_u32 v15, {LO}, v15")
    a(f"s_lshl_b32 s24, s4, 14\ns_lshl_b32 s25, s3, 10\ns_add_u32 s24, s24, s25\ns_add_u32 s24, s24, {WS_H1}\ns_add_u32 s25, s24, 4096\ns_add_u32 s26, s24, 8192\ns_add_u32 s27, s24, 12288")
    a(f"s_lshl_b32 s12, s4, 12\ns_add_u32 s12, s12, {WS_FL}\ns_add_u32 s12, s12, s8\ns_addc_u32 s13, s9, 0\ns_mov_b32 s22, s7\ns_mov_b32 s23, s7")
    a(f"s_mul_i32 s14, s3, {QP}\ns_add_u32 s14, s14, {SB+QB}\nv_lshl_add_u32 v149, v0, 2, s14")
    a("s_mov_b32 s58, 0\nL_hint:\ns_add_u32 s59, s58, 64\ns_load_dwordx16 s[80:95], s[12:13], s58\ns_load_dwordx16 s[32:47], s[12:13], s59\ns_add_u32 s58, s58, 128\ns_cmp_ge_u32 s58, 4096\ns_cbranch_scc1 L_hintd\ns_waitcnt lgkmcnt(0)")
    for i in list(range(80, 96, 2)) + list(range(32, 48, 2)): a(f"s_cmp_lg_u64 s[{i}:{i+1}], s[22:23]\ns_cbranch_scc1 L_hint")
    a("L_hintd:\ns_waitcnt lgkmcnt(0)")
    stamp(7)
    X = WS_H1 ^ WS_H1B
    def kreads():
        osetup(); spin4(0)
        stamp(6)
        for t in range(3):
            for j in range(4): a(f"ds_read_b128 v[{KF+16*t+4*j}:{KF+16*t+4*j+3}], v{4+j} offset:{t*16384}")
    poll([(32+4*p, 2, f"s{24+p}") for p in range(4)], chk_tag, mid=kreads,
         each=f"s_cmp_gt_u32 s58, {POLL_MAX-3}\ns_cbranch_scc1 L_qa\n" + PUBB + "\n" + "\n".join(f"s_xor_b32 s{r}, s{r}, {X}" for r in range(24, 28)) + "\nL_qa:")
    stamp(11)
    a("v_pk_add_f32 v[32:33], v[32:33], v[36:37]\nv_pk_add_f32 v[40:41], v[40:41], v[44:45]\nv_pk_add_f32 v[32:33], v[32:33], v[40:41]")
    a("v_cvt_pk_bf16_f32 v32, v32, v33\nds_write_b32 v149, v32\ns_mov_b64 exec, 1\nds_write_b32 v148, v148 offset:48\ns_mov_b64 exec, -1")
    a("L_qs:\nds_read_b128 v[48:51], v1 offset:48")
    for j in range(4): a(f"ds_read_b128 v[{QF+4*j}:{QF+4*j+3}], v3 offset:{j*64}")
    a("v_min3_u32 v53, v34, v38, v42\nv_max3_u32 v52, v34, v38, v42\nv_min3_u32 v53, v53, v46, v58\nv_max3_u32 v52, v52, v46, v58")
    a(lg(4) + "\nv_min_u32 v48, v48, v49\nv_min3_u32 v48, v48, v50, v51\nv_cmp_eq_u32 vcc, 0, v48\ns_cbranch_vccnz L_qs")
    stamp(3)
    def stile(t):
        for j in range(4):
            if t == 0: a(lg(3-j))
            c = "0" if j == 0 else f"v[{DR+4*t}:{DR+4*t+3}]"
            a(f"v_mfma_f32_16x16x32_bf16 v[{DR+4*t}:{DR+4*t+3}], v[{KF+16*t+4*j}:{KF+16*t+4*j+3}], v[{QF+4*j}:{QF+4*j+3}], {c}")
    def pack(t):
        for r in range(4): a(f"v_mov_b32_dpp v{DR+r}, v{DR+4*t+r} quad_perm:[0,1,2,3] row_mask:0xf bank_mask:{hex(1<<t)}")
    stile(0)
    a("v_cmp_ne_u32 vcc, v52, v53")
    stile(1)
    a("s_cmp_lg_u64 vcc, 0\ns_cselect_b32 s14, 2, " + ("1" if fast else "2") + "\nv_mov_b32 v52, s14")
    a("s_cmp_eq_u32 s19, 0\ns_cbranch_scc1 L_no3")
    stile(2); pack(2)
    a("L_no3:\ns_nop 2")
    pack(1)
    S = [DR+r for r in range(4)]
    for x in S: a(f"v_cvt_pk_bf16_f32 v{x}, 0, v{x}")
    for x in S[::2]: a(f"v_pk_mul_f32 v[{x}:{x+1}], v[{x}:{x+1}], v[146:147] op_sel_hi:[1,0]")
    for x in S: a(f"v_cvt_pk_bf16_f32 v{x}, 0, v{x}")
    for x in S[::2]: a(f"v_pk_mul_f32 v[{x}:{x+1}], v[{x}:{x+1}], v[146:147] op_sel:[0,1]")
    a(f"v_max_f32 v20, v{S[0]}, v{S[1]}\nv_max3_f32 v20, v20, v{S[2]}, v{S[3]}")
    a(f"v_max_f32_dpp v20, v20, v20 row_ror:4 {DPPF}\nv_max_f32_dpp v20, v20, v20 row_ror:8 {DPPF}")
    a("v_permlane32_swap_b32 v20, v21\nv_max_f32 v20, v20, v21\nv_permlane16_swap_b32 v20, v21\nv_max_f32 v20, v20, v21")
    a("s_mov_b64 exec, 15\nds_write_b32 v62, v20\ns_mov_b64 exec, 1\nds_write_b32 v148, v52 offset:32\ns_mov_b64 exec, -1")
    L = lab("spin")
    a(f"s_movk_i32 s58, {POLL_MAX}\n{L}:\nds_read_b128 v[16:19], v61\ns_sub_u32 s58, s58, 1\ns_waitcnt lgkmcnt(0)\ns_cbranch_scc1 {L}d\nv_max_u32 v21, v16, v17\nv_max_f32 v20, v16, v17\nv_max3_u32 v21, v21, v18, v19\nv_max3_f32 v20, v20, v18, v19\nv_cmp_eq_u32 vcc, -1, v21\ns_cbranch_vccnz {L}\n{L}d:")
    for x in S[::2]: a(f"v_pk_add_f32 v[{x}:{x+1}], v[{x}:{x+1}], v[20:21] op_sel_hi:[1,0] neg_lo:[0,1] neg_hi:[0,1]")
    for x in S: a(f"v_exp_f32 v{x}, v{x}")
    a(f"v_cvt_pk_bf16_f32 v16, v{S[0]}, v{S[1]}\nv_cvt_pk_bf16_f32 v17, v{S[2]}, v{S[3]}\ns_mov_b64 exec, s[16:17]\nds_write_b64 v60, v[16:17]\ns_mov_b64 exec, -1\ns_waitcnt lgkmcnt(0)")
    a("s_barrier")
    stamp(5)
    a("s_setprio 0\nds_read_b128 v[24:27], v1 offset:32\ns_waitcnt lgkmcnt(0)")
    locflag(24)
    a("s_cmp_eq_u32 s59, 1\ns_cbranch_scc1 L_qb\n" + PUBB + f"\nL_qb:\ns_cmp_ge_u32 s5, 16\ns_cbranch_scc1 {LV_(3)}")
    a("s_barrier")
    zero(64, 4)
    a(f"v_and_b32 v12, 1, v0\nv_lshlrev_b32 v12, 6, v12\nv_lshl_add_u32 v12, v11, 4, v12\nv_and_b32 v13, 2, v0\nv_lshl_add_u32 v12, v13, 8, v12\nv_add_u32 v12, {SB}, v12")
    a(f"s_lshl_b32 s31, s4, 12\ns_and_b32 s13, s31, 0x6000\ns_add_u32 s31, s31, s13\ns_lshl_b32 s13, s5, 8\ns_add_u32 s31, s31, s13\ns_lshl_b32 s13, s3, 16\ns_add_u32 s31, s31, s13\ns_add_u32 s31, s31, {WS_H3}")
    a("s_barrier")
    a(f"v_lshlrev_b32 v3, 4, v10\nv_lshl_add_u32 v3, v11, 13, v3\ns_lshl_b32 s12, s3, 5\ns_add_u32 s12, s12, {SB+1280}\nv_lshl_add_u32 v13, v10, 1, s12\nv_lshlrev_b32 v1, 3, v10\nv_add_u32 v1, {SB+1280}, v1\n" + settag(82))
    a("s_cmp_eq_u32 s59, 1\ns_barrier\ns_cbranch_scc0 L_oslow")

    a("L_ofast:")
    if True:
        def wofrags():
            a("s_cmp_ge_u32 s3, 4\ns_cbranch_scc1 L_nwo")
            trread(4, WF, 15)
            a("L_nwo:")
        poll([(160, 152, "s44"), (156, 152, "s45")], chk_sen, last="s[48:49]", mid=wofrags)
    stamp(9)
    L = lab("spin")
    a("ds_read2_b32 v[28:29], v154 offset0:0 offset1:8")
    unpack(32, 160, 155); unpack(48, 156, 155)
    a(f"s_waitcnt lgkmcnt(0)\nv_max_u32 v30, v28, v29\nv_cmp_eq_u32 vcc, -1, v30\ns_cbranch_vccnz {L}\n{L}d:")
    stubs.append(f"{L}:\ns_movk_i32 s58, {POLL_MAX}\n{L}l:\nds_read2_b32 v[28:29], v154 offset0:0 offset1:8\ns_sub_u32 s58, s58, 1\ns_waitcnt lgkmcnt(0)\ns_cbranch_scc1 {L}d\nv_max_u32 v30, v28, v29\nv_cmp_eq_u32 vcc, -1, v30\ns_cbranch_vccnz {L}l\ns_branch {L}d")
    for i in range(8): a(f"v_mul_f32 v{32+i}, v28, v{32+i}")
    for i in (0, 4, 1, 5, 2, 6, 3, 7): a(f"v_fmac_f32 v{32+i}, v29, v{48+i}")
    redscat8(32)
    a(f"v_cvt_pk_bf16_f32 v32, v32, v33\nds_write_b32 v153, v32\ns_cmp_ge_u32 s3, 4\ns_waitcnt lgkmcnt(0)\ns_barrier\ns_cbranch_scc1 {LV_(2)}")
    for m in range(4): a(f"ds_read_b128 v[{16+4*m}:{19+4*m}], v12 offset:{128*m}")
    for m in range(4): a(lg(3-m) + "\n" + smf(64, 16+4*m, WF+8*m))
    a("s_mov_b64 exec, 0xffff\nv_add_f32 v20, v64, v65\nv_add_f32 v21, v66, v67\nv_add_f32 v20, v20, v21")
    a("v_cvt_pk_bf16_f32 v20, v20, v20\nds_write_b16 v13, v20\ns_mov_b32 exec_lo, -1\ns_waitcnt lgkmcnt(0)\ns_barrier")
    a("ds_read_b64 v[80:81], v1\ns_waitcnt lgkmcnt(0)\nbuffer_store_dwordx4 v[80:83], v3, s[8:11], s31 offen sc1")
    stamp(10)
    a(leave(1))
    for t in stubs: a(t)
    stubs.clear()
    a("L_oslow:")
    a(f"s_add_u32 s44, s44, {WS_H2B-WS_H2A}\ns_add_u32 s45, s45, {WS_H2B-WS_H2A}")
    a(f"s_lshl_b32 s12, s4, 16\ns_lshl_b32 s13, s46, 15\ns_add_u32 s12, s12, s13\ns_lshl_b32 s13, s18, 4\ns_add_u32 s12, s12, s13\ns_add_u32 s12, s12, {WS_H2B+1088}\ns_add_u32 s13, s12, 16384\nv_lshlrev_b32 v22, 11, v8\n" + settag(54))
    poll([(48, 22, "s12"), (52, 22, "s13")], chk_tag2, last="s[48:49]")
    a("s_branch L_ofast")

    def xload():
        a("v_lshlrev_b32 v20, 3, v10\nv_lshl_add_u32 v20, v11, 1, v20\ns_lshl_b32 s16, s3, 7\nv_add_u32 v20, s16, v20\nglobal_load_ushort v60, v20, s[32:33]")
    WW = 64
    DA = [128, 132, 136, 140, 152, 156, 160, 164]
    a("L_lf:\ns_lshl_b32 s101, s4, 2\ns_add_u32 s29, s29, s101\ns_sub_u32 s29, s29, 4\ns_barrier")
    a(f"s_load_dwordx2 s[12:13], s[0:1], 48\ns_load_dwordx2 s[48:49], s[0:1], 64\ns_load_dwordx2 s[8:9], s[0:1], 96\ns_load_dwordx2 s[52:53], s[0:1], 80\ns_mov_b32 s14, {512*1792*2}")
    a("v_mul_u32_u24 v4, 3584, v8\nv_add_u32 v4, v4, v9\nv_xor_b32 v5, 64, v4")
    a(f"s_mul_i32 s26, s18, {8*3584}\ns_lshl_b32 s27, s29, 7\ns_add_u32 s26, s26, s27\ns_lshl_b32 s20, s18, 10\ns_add_u32 m0, s20, {LW1}\ns_lshl_b32 s20, s18, 14")
    trsetup()
    a("s_waitcnt lgkmcnt(0)\ns_load_dword s6, s[8:9], 0")
    a(f"s_add_u32 s22, s20, {LW2}\nv_add_u32 v24, s22, v14\nv_xor_b32 v25, 32, v24\nv_xor_b32 v26, 64, v24\nv_xor_b32 v27, 0x60, v24")
    a(f"v_and_b32 v13, 1, v0\nv_lshlrev_b32 v13, 6, v13\nv_lshl_add_u32 v13, v11, 4, v13\nv_add_u32 v13, {SB+1280}, v13\nv_mov_b32 v63, 0xffff0000\nv_mov_b32 v22, 0\nv_mov_b32 v30, 0")
    h5base(31, 30)
    a("s_lshl_b32 s30, s18, 9\ns_add_u32 s31, s31, s30\nv_and_b32 v3, 0x1f0, v2\nv_and_b32 v6, 32, v0\nv_lshl_add_u32 v3, v6, 8, v3")
    a("s_waitcnt lgkmcnt(0)\ns_add_u32 s30, s6, 1\nv_mov_b32 v61, s30\n" + TAG + "\ns_barrier\ns_barrier")
    xload()
    for i in range(16):
        if fw1[i] != "-": a(f"s_waitcnt vmcnt({int(fw1[i], 16)-1})")
        a(f"buffer_load_dwordx4 v{4+(i&1)}, s[12:15], s26 offen {nt} lds\ns_add_u32 s26, s26, {32*3584}\ns_add_u32 m0, m0, 4096")
    a(f"s_mov_b32 s12, s48\ns_mov_b32 s13, s49\ns_lshl_b32 s26, s29, 16\ns_lshl_b32 s21, s18, 8\ns_add_u32 s26, s26, s21\ns_add_u32 s20, s20, {LW2}")
    a("s_bfe_u32 s21, s29, 0x20001\ns_lshl_b32 s22, s21, 13\ns_xor_b32 s26, s26, s22\ns_lshl_b32 s22, s21, 10\ns_xor_b32 s20, s20, s22")
    a("v_lshl_add_u32 v4, v8, 10, v9\nv_xor_b32 v5, 64, v4")
    for i in range(16):
        rb = (i>>2) | ((i>>1)&1)<<2
        a(f"s_xor_b32 m0, s20, {rb<<10}\ns_xor_b32 s21, s26, {(rb<<13) + (i&1)*128}")
        if i & 1: a("s_add_u32 m0, m0, 8192")
        if i < p2: a("s_waitcnt vmcnt(7)")
        if i == p2:
            a(f"s_waitcnt vmcnt({p2})"); stamp(3)
            a("s_barrier"); stamp(4)
        a(f"buffer_load_dwordx4 v{4+(rb>>2)}, s[12:15], s21 offen {nt} lds")
    a("s_branch L_h3")
    a("L_cf:\ns_setprio 0\ns_lshl_b32 s101, s4, 2\ns_add_u32 s29, s29, s101\ns_sub_u32 s29, s29, 4")
    xload()
    a("s_lshl_b32 s27, s29, 7\ns_lshl_b32 s17, s3, 5\ns_add_u32 s27, s27, s17\nv_lshl_add_u32 v21, v10, 1, s27\nglobal_load_ushort v61, v21, s[46:47]")
    a("s_cmp_eq_u32 s5, 28\ns_cselect_b32 s28, s4, 8\ns_cmp_eq_u32 s2, 239\ns_cselect_b32 s28, 0, s28\ns_and_b32 s19, s28, 7\ns_lshl_b32 s19, s19, 7\ns_lshl_b32 s26, s3, 3\ns_add_u32 s19, s19, s26")
    a("v_and_b32 v28, 3, v0\nv_lshlrev_b32 v22, 1, v28\nv_lshl_add_u32 v22, v11, 5, v22\nv_add_u32 v22, s19, v22\nglobal_load_ushort v62, v22, s[50:51]")
    a(f"v_add_u32 v15, {LW1}, v15\nv_add_u32 v12, {SB}, v12\nv_lshl_add_u32 v21, v10, 1, s17\nv_add_u32 v21, {SB+1280}, v21\nv_add_u32 v29, {SB}, v22")
    a("v_and_b32 v30, 12, v0\nv_lshlrev_b32 v30, 9, v30\nv_lshl_add_u32 v30, v11, 14, v30\nv_lshl_add_u32 v30, v28, 4, v30")
    for i in range(4): a(f"v_mov_b32 v{16+i}, 0x3f803f80")
    zero(24, 4)
    a("v_mov_b32 v31, v16\nv_mov_b32 v3, 0\nv_mov_b32 v13, 0\ns_barrier")
    a("ds_read_b32 v4, v1 offset:20\ns_waitcnt lgkmcnt(0)\nv_cmp_eq_u32 vcc, -1, v4\ns_cbranch_vccz L_cf3\n" + PUBB + "\nL_cf3:")
    trread(8, WW, 15)
    a("s_waitcnt lgkmcnt(0)")
    for m in range(8): a(smf(24, 16, WW+8*m))
    a("v_add_f32 v27, v24, v25")
    zero(24, 2)
    a("s_waitcnt vmcnt(0)\nv_lshlrev_b32 v61, 16, v61\nv_lshlrev_b32 v62, 16, v62")
    a(f"L_h3:\nv_mov_b32 v1, {SB+1152}\nds_read_b32 v1, v1 offset:16")
    for d in DA: zero(d, 4)
    a(f"v_lshlrev_b32 v58, 16, v60\nv_add_u32 v20, {SB}, v20\nv_mov_b32 v56, 0x3f80\nv_mov_b32 v57, 1.0\n" + settag(38))
    a(f"v_lshlrev_b32 v23, 4, v10\nv_lshl_add_u32 v23, v11, 11, v23\ns_and_b32 s22, s4, 3\ns_lshl_b32 s22, s22, 16\ns_lshl_b32 s23, s3, 8\ns_add_u32 s22, s22, s23\ns_add_u32 s22, s22, {WS_H3}\ns_add_u32 s23, s22, 16384\ns_add_u32 s24, s22, 32768\ns_add_u32 s25, s22, 49152")
    a("s_waitcnt lgkmcnt(0)\nv_add_u32 v23, v23, v1\nv_add_u32 v30, v30, v1")
    a(f"s_waitcnt vmcnt({xw})\ns_barrier")
    stamp(5)
    def w2frags():
        a("s_cmp_lt_u32 s3, 4\ns_cbranch_scc1 L_nw2\ns_waitcnt vmcnt(4)")
        for j in range(8): trread(1, WW + 8*j, 24 + (j&3), (j>>2)*8192)
        a("L_nw2:")
    poll([(40+4*i, 23, f"s{22+i}") for i in range(4)], chk_tag2, mid=w2frags)
    stamp(7)
    def sum4(dst, srcs):
        a(f"v_lshlrev_b32 v{dst}, 16, v{srcs[0]}\nv_lshlrev_b32 v{dst+2}, 16, v{srcs[0]+1}\nv_and_b32 v{dst+1}, v63, v{srcs[0]}\nv_and_b32 v{dst+3}, v63, v{srcs[0]+1}")
        for r in srcs[1:]:
            for i in (0, 2, 1, 3): a(f"v_dot2c_f32_bf16 v{dst+i}, v{r+(i>>1)}, v{56+(i&1)}")
        redscat4(dst)
    sum4(32, (40, 44, 48, 52))
    a("v_cvt_pk_bf16_f32 v32, 0, v32\nv_add_f32 v32, v32, v58\nv_cvt_pk_bf16_f32 v32, v32, v32")
    a("ds_write_b16 v20, v32\ns_cmp_ge_u32 s3, 4\ns_waitcnt lgkmcnt(0)\ns_barrier\ns_cbranch_scc1 L_f2")
    a("ds_read_b128 v[16:19], v12\nds_read_u16 v60, v29\n" + lg(1))
    for i in range(4): a(f"v_dot2c_f32_bf16 v24, v{16+i}, v31\nv_dot2c_f32_bf16 v25, v{16+i}, v{16+i}")
    sm = lambda m: smf(DA[m], 16, WW+8*m)
    a(sm(0) + "\n" + sm(2) + "\n" + sm(4))
    a("v_permlane32_swap_b32 v24, v25\nv_add_f32 v24, v24, v25")
    a(sm(6) + "\n" + sm(1))
    a(f"v_add_f32_dpp v24, v24, v24 {ROWM[0]} {DPPF}")
    a(sm(3))
    a(f"v_add_f32 v32, v128, v129\nv_add_f32_dpp v24, v24, v24 {ROWM[1]} {DPPF}")
    a(sm(5))
    a(dp(32, 136, 137, 2) + f"\nv_add_f32_dpp v24, v24, v24 {ROWM[2]} {DPPF}")
    a(sm(7))
    a(dp(32, 152, 153, 4) + f"\nv_add_f32_dpp v24, v24, v24 {ROWM[3]} {DPPF}\nv_add_f32 v33, v134, v135")
    a(dp(32, 160, 161, 8) + "\nv_permlane16_swap_b32 v24, v25\n" + dp(33, 142, 143, 2))
    a("v_add_f32 v24, v24, v25\nv_mul_f32 v24, 0x3b000000, v24\n" + dp(33, 158, 159, 4))
    a("s_mov_b32 s30, 0x3727c5ac\nv_permlane32_swap_b32 v24, v25\n" + dp(33, 166, 167, 8))
    a("v_fma_f32 v25, -v24, v24, v25\nv_add_f32 v32, v32, v33\nv_max_f32 v25, 0, v25\nv_cvt_pk_bf16_f32 v25, 0, v25\nv_permlane32_swap_b32 v32, v33\nv_add_f32 v25, s30, v25\nv_add_f32 v32, v32, v33")
    a("v_cvt_pk_bf16_f32 v25, 0, v25\nv_sqrt_f32 v25, v25\nv_permlane16_swap_b32 v32, v33\nv_cvt_pk_bf16_f32 v25, 0, v25\nv_rcp_f32 v25, v25\nv_cvt_pk_bf16_f32 v24, 0, v24\nv_add_f32 v32, v32, v33\nv_fma_f32 v32, -v24, v27, v32")
    a("v_fma_f32 v32, v32, v25, v61\nv_max_f32 v32, 0, v32\nv_mul_f32 v32, v32, v32\nv_cvt_pk_bf16_f32 v32, v32, v32")
    a(f"s_mov_b64 exec, 0xffff\nds_write_b16 v21, v32\ns_mov_b64 exec, -1\ns_cmp_ge_u32 s28, 8\ns_waitcnt lgkmcnt(0)\ns_barrier\ns_cbranch_scc1 {LV_(1)}")
    stamp(8)
    a(f"s_lshl_b32 s26, s28, 8\ns_lshl_b32 s27, s3, 6\ns_add_u32 s26, s26, s27\ns_add_u32 s26, s26, {WS_H5}\ns_add_u32 s27, s26, 65536\nv_lshlrev_b32 v60, 16, v60\nv_mov_b64 v[52:53], 0\n" + settag(54))
    a("s_mov_b32 s24, -1\ns_mov_b32 s25, 0xffff\ns_mov_b32 s20, 0x000f000f\ns_mov_b32 s21, 0x000f000f\ns_barrier")
    for i in range(h5d or 0): a("s_nop 15")
    poll([(44, 30, "s26"), (52, 30, "s27")], chk_tag2, last="s[24:25]")
    stamp(10)
    sum4(48, (44, 52))
    a(f"v_add_f32_dpp v48, v48, v48 row_ror:4 {DPPF}\nv_add_f32_dpp v48, v48, v48 row_ror:8 {DPPF}")
    a("v_cvt_pk_bf16_f32 v48, 0, v48\nv_add_f32 v48, v48, v62\nv_cvt_pk_bf16_f32 v48, 0, v48\nv_add_f32 v48, v48, v60\nv_cvt_pk_bf16_f32 v48, v48, v48")
    a("s_mov_b64 exec, s[20:21]\nglobal_store_short v22, v48, s[52:53]")
    stamp(11)
    if amp:
        a(f"s_or_b32 s26, s29, s3\ns_cbranch_scc1 L_end\ns_waitcnt lgkmcnt(0)\ns_sub_u32 s26, s{streg(amp[1])}, s{streg(amp[0])}\ns_mul_i32 s26, s26, {amp[2] if len(amp) > 2 else 10}\ns_min_u32 s26, s26, 100000")
        a("s_memrealtime s[24:25]\ns_waitcnt lgkmcnt(0)\nL_amp:\ns_memrealtime s[22:23]\ns_waitcnt lgkmcnt(0)\ns_sub_u32 s27, s22, s24\ns_cmp_lt_u32 s27, s26\ns_cbranch_scc1 L_amp")
    a(leave(0))
    a("L_f2:\ns_cmp_lg_u32 s3, 5\ns_cbranch_scc1 L_f4")
    a("s_cmp_lg_u32 s2, 251\ns_cbranch_scc1 L_f3\ns_mov_b64 exec, 1\nbuffer_store_dword v61, v0, s[8:11], 0 offen sc1\ns_mov_b64 exec, -1")
    a("L_f3:\ns_cmp_lg_u32 s5, 30\ns_cbranch_scc1 L_f4\nbuffer_wbl2 sc1")
    a("L_f4:\ns_barrier")
    stamp(8)
    a("ds_read_b128 v[16:19], v13\ns_waitcnt lgkmcnt(0)")
    for j in range(8):
        a(smf(DA[j], 16, WW+8*j))
        if j >= 6: a(f"v_add_f32 v{32+2*(j-6)}, v{DA[2*(j-6)]}, v{DA[2*(j-6)]+1}\nv_add_f32 v{33+2*(j-6)}, v{DA[2*(j-6)+1]}, v{DA[2*(j-6)+1]+1}")
    for j in range(4, 8): a(dp(28+j, DA[j], DA[j]+1, 10))
    a("v_cvt_pk_bf16_f32 v36, v32, v33\nv_cvt_pk_bf16_f32 v37, v34, v35\nbuffer_store_dwordx4 v[36:39], v3, s[8:11], s31 offen sc1")
    stamp(9)
    if h5d is None: a("s_waitcnt vmcnt(0)")
    a("s_barrier\n" + leave(0))
    for t in stubs: a(t)
    if stamps:
        a("L_fin4:\ns_barrier\nL_fin3:\ns_barrier\nL_fin2:\ns_barrier\nL_fin1:\ns_barrier\nL_fin0:")
        a("s_mov_b64 exec, -1\ns_memrealtime s[90:91]\ns_waitcnt lgkmcnt(0)\nv_mov_b32 v8, 0")
        for i in range(12): a(f"v_writelane_b32 v8, s{streg(i)}, {i}")
        a("v_writelane_b32 v8, s90, 15")
        a(f"s_mul_i32 s90, s2, 9\ns_add_u32 s90, s90, s3\ns_lshl_b32 s90, s90, 6\ns_add_u32 s90, s90, {WS_ST}")
        a("v_lshlrev_b32 v9, 2, v0\ns_mov_b64 exec, 0xffff\nbuffer_store_dword v8, v9, s[8:11], s90 offen sc1")
    a("L_end:\ns_endpgm")
    a(".fill 384, 4, 0xbf810000")
    return wrap(DOC.lstrip("\n") + a.text(), 256, 576, LDS_BYTES, 168)

if __name__ == "__main__":
    for a_ in sys.argv[1:]:
        name, kw = a_.split(":") if ":" in a_ else (a_, "")
        open(name + ".s", "w").write(gen(**eval("dict(%s)" % kw)))
```
